```python
import torch

def _softmax(x, axis=-1):
    return torch.softmax(x, dim=axis)
def _gelu(x):
    return torch.nn.functional.gelu(x, approximate="tanh")
def _silu(x):
    return torch.nn.functional.silu(x)
def _sigmoid(x):
    return torch.sigmoid(x)
def _layernorm(x, axis=-1, eps=1e-5):
    m = x.mean(dim=axis, keepdim=True)
    v = x.var(dim=axis, keepdim=True, unbiased=False)
    return (x - m) / torch.sqrt(v + eps)
def _scatter_add(tgt, idx, src, axis=0):
    return tgt.clone().index_add_(axis, idx, src)
def _segment_sum(src, seg, n):
    out = torch.zeros((n,) + src.shape[1:], dtype=src.dtype)
    return out.index_add_(0, seg, src)
def _pad(x, pw):
    flat = tuple(v for pair in reversed(pw) for v in pair)
    return torch.nn.functional.pad(x, flat)

kernel_name = 'standalone__mha_block_cached__near_ridge'

def setup_inputs():

    _w = (lambda a: (lambda t: t.to(torch.bfloat16) if t.is_floating_point() else t)(torch.as_tensor(a)))
    B, Sq, D = 16, 48, 640
    H, Sk, Dh = 32, 48, 128
    return {
        "x": _w((lambda *s: torch.randn(*s, dtype=torch.bfloat16) * 0.8)(B, Sq, D)),
        "k_cache": _w((lambda *s: torch.randn(*s, dtype=torch.bfloat16) * 0.8)(B, H, Sk, Dh)),
        "v_cache": _w((lambda *s: torch.randn(*s, dtype=torch.bfloat16) * 0.05)(B, H, Sk, Dh)),
        "wq": _w((lambda *s: torch.randn(*s, dtype=torch.bfloat16) * 0.8)(D, H * Dh) * (D ** -0.5)),
        "wo": _w((lambda *s: torch.randn(*s, dtype=torch.bfloat16) * 0.05)(H * Dh, D) * ((H * Dh) ** -0.5)),
    }

def reference(x, k_cache, v_cache, wq, wo):
    B, Sq, D = x.shape
    H, Dh = 32, 128
    q = (lambda x, *d: x.permute(*d))((x @ wq).reshape(B, Sq, H, Dh), 0, 2, 1, 3)
    scores = torch.einsum("bhqd,bhkd->bhqk", q, k_cache) * (Dh ** -0.5)
    p = _softmax(scores, axis=-1)
    o = torch.einsum("bhqk,bhkd->bhqd", p, v_cache)
    return (lambda x, *d: x.permute(*d))(o, 0, 2, 1, 3).reshape(B, Sq, H * Dh) @ wo
```

```python
NAME = "standalone__mha_block_cached__near_ridge"

HEADER_COMMENTS = """; Kernarg layout for this problem (64 bytes, ptrs only, base s[0:1]):
"""

X_BYTES = 16 * 48 * 640 * 2
KV_BYTES = 16 * 32 * 48 * 128 * 2
WQ_BYTES = 640 * 4096 * 2
WO_BYTES = 4096 * 640 * 2
OUT_BYTES = 16 * 48 * 640 * 2
WS_BYTES = 268435456


class Asm:
    def __init__(self):
        self.lines = []
        self.nlabel = 0

    def __call__(self, s):
        for l in s.split("\n"):
            l = l.strip()
            if not l:
                continue
            if l.endswith(":") or l.startswith("."):
                self.lines.append(l)
            else:
                self.lines.append("    " + l)

    def label(self, base="L"):
        self.nlabel += 1
        return f"{base}_{self.nlabel}"

    def text(self):
        return "\n".join(self.lines) + "\n"


def kernel_begin(a, name):
    a(f".globl {name}")
    a(".p2align 8")
    a(f".type {name},@function")
    a(f"{name}:")


def kernel_desc(name, vgpr, sgpr, accum):
    return f""".p2align 6
.amdhsa_kernel {name}
  .amdhsa_next_free_vgpr {vgpr}
  .amdhsa_next_free_sgpr {sgpr}
  .amdhsa_accum_offset {accum}
  .amdhsa_group_segment_fixed_size 0
  .amdhsa_kernarg_size 64
  .amdhsa_user_sgpr_count 2
  .amdhsa_user_sgpr_kernarg_segment_ptr 1
  .amdhsa_system_sgpr_workgroup_id_x 1
.end_amdhsa_kernel
"""


def srd(a, d, base, nbytes):
    a(f"s_mov_b32 s{d}, s{base}")
    a(f"s_and_b32 s{d+1}, s{base+1}, 0xffff")
    a(f"s_mov_b32 s{d+2}, {nbytes}")
    a(f"s_mov_b32 s{d+3}, 0x20000")
```

```python
import sys, argparse
from asmgen import *

WS_EPOCH = 0x0
WS_FLAG1 = 0x1000
WS_FLAG2 = 0x4000
WS_O     = 0x100000
WS_PART  = 0x800000
WS_STAMP = 0x8000000

SLOT = [0, 36864, 65536]
XB = 12288
WOCH = 20480
LDS_TOTAL = 163840


class VM:
    def __init__(self, a):
        self.a = a
        self.ops = []
    def issue(self, tag):
        self.ops.append(tag)
    def wait(self, tag):
        idx = max(i for i, t in enumerate(self.ops) if t == tag)
        n = len(self.ops) - 1 - idx
        assert n <= 63, n
        self.a(f"s_waitcnt vmcnt({n})")
    def wait_all(self):
        self.a("s_waitcnt vmcnt(0)")


def gen(out, stamps=False, ntx=True, kvpos="last"):
    a = Asm()
    vm = VM(a)
    name = NAME + "_kernel"
    nstamp = [0]
    def stamp():
        if not stamps:
            return
        r = 70 + 2 * nstamp[0]
        assert r + 1 <= 101
        nstamp[0] += 1
        a(f"s_memrealtime s[{r}:{r+1}]")

    a('.amdgcn_target "amdgcn-amd-amdhsa--gfx950"')
    a(".text")
    kernel_begin(a, name)
    a("s_cmp_ge_u32 s2, 256")
    a("s_cbranch_scc1 L_end")
    stamp()
    a("s_load_dwordx16 s[36:51], s[0:1], 0")
    sW, sH, sP, sJ, sI = "s3", "s4", "s5", "s6", "s7"
    a("v_lshrrev_b32 v2, 6, v0")
    a("v_and_b32 v1, 63, v0")
    a("s_and_b32 s6, s2, 7")
    a("v_readfirstlane_b32 s3, v2")
    a("s_lshr_b32 s7, s2, 3")
    a("s_and_b32 s7, s7, 3")
    a("s_lshr_b32 s5, s2, 5")
    a("s_lshl_b32 s4, s6, 2")
    a("s_add_u32 s4, s4, s7")
    a("s_mul_i32 s53, s7, 3")
    a("s_add_u32 s53, s53, s5")
    a("s_add_u32 s53, s53, s6")
    for _ in range(2):
        a("s_cmp_ge_u32 s53, 10")
        a("s_cselect_b32 s54, 10, 0")
        a("s_sub_u32 s53, s53, s54")
    sDH, sBB = "s58", "s59"
    a("s_and_b32 s58, s3, 1")
    a("s_lshr_b32 s59, s3, 1")

    vL = "v1"
    a("v_lshrrev_b32 v20, 3, v1")
    a("v_and_b32 v21, 7, v1")
    a("v_lshrrev_b32 v22, 4, v1")
    a("v_xor_b32 v21, v21, v22")
    a("s_mul_i32 s54, s5, 96")
    a("s_mul_i32 s55, s3, 24")
    a("s_add_u32 s54, s54, s55")
    a("v_add_u32 v20, s54, v20")
    a("v_mul_u32_u24 v20, 1280, v20")
    a("s_lshl_b32 s55, s58, 2")
    a("v_xor_b32 v23, s55, v21")
    a("v_xor_b32 v24, 4, v23")
    a("v_lshl_add_u32 v2, v23, 4, v20")
    a("v_lshl_add_u32 v3, v24, 4, v20")
    a(f"v_add_u32 v3, {10240-1024}, v3")
    a(f"v_add_u32 v4, {2*(10240-1024)}, v2")
    a("v_and_b32 v20, 15, v1")
    a("v_lshlrev_b32 v21, 1, v22")
    a("v_xor_b32 v20, v20, v21")
    a("s_lshl_b32 s54, s3, 4")
    a("v_add_u32 v21, s54, v22")
    a("v_lshlrev_b32 v21, 13, v21")
    a("s_lshl_b32 s54, s4, 8")
    a("v_add_u32 v21, s54, v21")
    a("v_lshl_add_u32 v5, v20, 4, v21")
    a(f"v_add_u32 v6, {32768-1024}, v5")
    a("v_xor_b32 v20, 8, v20")
    a("v_lshl_add_u32 v7, v20, 4, v21")
    a(f"v_add_u32 v7, {2*(32768-1024)}, v7")
    a(f"v_add_u32 v8, {32768-1024}, v7")
    a("s_mul_i32 s56, s3, 3072")
    a("s_lshl_b32 s57, s3, 12")
    a(f"s_add_u32 s57, s57, {XB}")
    a("s_waitcnt lgkmcnt(0)")
    srd(a, 8, 36, X_BYTES)
    srd(a, 20, 42, WQ_BYTES)
    fx = " nt" if ntx else ""

    def issue_chunk(c):
        sl = SLOT[c % 3]
        a("s_lshl_b32 s54, s53, 7")
        a(f"s_add_u32 m0, s56, {sl}")
        a("s_lshl_b32 s55, s53, 19")
        for i in range(3):
            a(f"buffer_load_dwordx4 v{2+i}, s[8:11], s54 offen offset:{i*1024}{fx} lds")
            vm.issue(("c", c))
        a(f"s_add_u32 m0, s57, {sl}")
        a("s_add_u32 s53, s53, 1")
        for i in range(4):
            a(f"buffer_load_dwordx4 v{5+i}, s[20:23], s55 offen offset:{i*1024} nt lds")
            vm.issue(("c", c))
        a("s_cmp_ge_u32 s53, 10")
        a("s_cselect_b32 s53, 0, s53")

    issue_chunk(0)
    issue_chunk(1)
    srd(a, 12, 38, KV_BYTES)
    srd(a, 16, 40, KV_BYTES)
    srd(a, 24, 44, WO_BYTES)
    srd(a, 28, 46, OUT_BYTES)
    srd(a, 32, 50, WS_BYTES)
    a("s_lshl_b32 s54, s5, 7")
    a("s_load_dword s52, s[50:51], s54")

    a("v_and_b32 v20, 15, v1")
    a("v_lshrrev_b32 v21, 1, v20")
    a("v_xor_b32 v21, v21, v22")
    a("s_mul_i32 s54, s59, 48")
    a("v_add_u32 v20, s54, v20")
    a("v_lshlrev_b32 v20, 7, v20")
    a("v_lshl_add_u32 v9, v21, 4, v20")
    a("v_xor_b32 v10, 64, v9")
    a("v_add_u32 v11, 0x10000, v9")
    a("v_add_u32 v12, 0x10000, v10")
    a("v_bfe_u32 v20, v1, 2, 2")
    a("v_and_b32 v21, 1, v22")
    a("v_lshl_or_b32 v21, v21, 2, v20")
    a("s_lshl_b32 s54, s58, 2")
    a("v_xor_b32 v21, s54, v21")
    a("v_lshl_add_u32 v23, v22, 3, v20")
    a("v_lshlrev_b32 v23, 8, v23")
    a("v_and_b32 v24, 3, v1")
    a("v_lshl_add_u32 v23, v24, 3, v23")
    a(f"v_add_u32 v23, {XB}, v23")
    WQA = [13, 14, 15, 16]; WQA_HI = [17, 18, 19, 25]
    for T in range(4):
        a(f"v_xor_b32 v24, {T}, v21")
        a(f"v_lshl_add_u32 v{WQA[T]}, v24, 5, v23")
        a(f"v_add_u32 v{WQA_HI[T]}, 0x10000, v{WQA[T]}")
    a("s_lshl_b32 s54, s5, 1")
    a("s_add_u32 s54, s54, s59")
    a("s_lshl_b32 s54, s54, 5")
    a("s_add_u32 s54, s54, s4")
    a("s_mul_i32 s54, s54, 12288")
    a("s_lshl_b32 s55, s58, 7")
    a("s_add_u32 s60, s54, s55")
    a("v_and_b32 v20, 15, v1")
    a("v_lshlrev_b32 v21, 8, v20")
    a("v_lshl_add_u32 v26, v22, 3, v21")
    a("v_lshlrev_b32 v21, 10, v22")
    a("v_lshl_add_u32 v27, v20, 3, v21")

    ACC = 32
    KR = 80
    VR = 104
    VT = 128
    def fa(b, s, T): return b * 56 + (s * 4 + T) * 4
    def fb(b, s, qt): return b * 56 + 32 + (s * 3 + qt) * 4

    def issue_k():
        for kt in range(3):
            a(f"s_add_u32 s54, s60, {kt*4096}")
            for s in range(2):
                for hf in range(2):
                    r = KR + (kt * 2 + s) * 4 + hf * 2
                    a(f"buffer_load_dwordx2 v[{r}:{r+1}], v26, s[12:15], s54 offen offset:{s*64 + hf*32} nt")
                    vm.issue("K")
    def issue_v():
        for kt in range(3):
            a(f"s_add_u32 s54, s60, {kt*4096}")
            for e in range(4):
                r = VR + (kt * 4 + e) * 2
                a(f"buffer_load_dwordx2 v[{r}:{r+1}], v27, s[16:19], s54 offen offset:{e*256} nt")
                vm.issue("V")

    WOV = 152
    for i in range(5):
        a(f"v_add_u32 v20, {64*i}, v1")
        a("v_mul_u32_u24 v21, 52429, v20")
        a("v_lshrrev_b32 v21, 20, v21")
        a("v_mul_u32_u24 v23, 20, v21")
        a("v_sub_u32 v20, v20, v23")
        a("s_lshl_b32 s54, s58, 1")
        a("v_xor_b32 v20, s54, v20")
        a("s_lshl_b32 s54, s3, 4")
        a("v_add_u32 v21, s54, v21")
        a("v_mul_u32_u24 v21, 1280, v21")
        a(f"v_lshl_add_u32 v{WOV+i}, v20, 4, v21")
        if 0 < i < 4:
            a(f"v_subrev_u32 v{WOV+i}, {1024*i}, v{WOV+i}")
    a("s_mul_i32 s61, s6, 655360")
    a("s_mul_i32 s54, s7, 320")
    a("s_add_u32 s61, s61, s54")
    a("s_mul_i32 s62, s3, 5120")

    def issue_wo(m, part=None):
        rng = range(5) if part is None else part
        a(f"s_add_u32 s54, s5, {m}")
        a("s_and_b32 s54, s54, 7")
        a("s_mul_i32 s54, s54, 81920")
        a("s_add_u32 s54, s54, s61")
        a(f"s_add_u32 m0, s62, {m*WOCH}")
        for i in rng:
            if i == 4:
                a(f"s_add_u32 m0, s62, {m*WOCH + 4096}")
                a("s_nop 0")
                a(f"buffer_load_dwordx4 v{WOV+i}, s[24:27], s54 offen nt lds")
            else:
                if i == 0:
                    a("s_nop 0")
                a(f"buffer_load_dwordx4 v{WOV+i}, s[24:27], s54 offen offset:{i*1024} nt lds")
            vm.issue(("wo", m))

    if kvpos == "first":
        issue_k(); issue_v()

    def reads(c):
        b = c & 1
        sl = SLOT[c % 3]
        hi = sl >= 65536
        off0 = sl - (65536 if hi else 0)
        L = []
        for s in range(2):
            for T in range(4):
                ad = (WQA_HI if hi else WQA)[T]
                for hf in range(2):
                    r = fa(b, s, T) + 2 * hf
                    L.append(f"ds_read_b64_tr_b16 a[{r}:{r+1}], v{ad} offset:{off0 + (32*s + 4*hf)*256}")
            for qt in range(3):
                ad = (11 if hi else 9) + s
                r = fb(b, s, qt)
                L.append(f"ds_read_b128 a[{r}:{r+3}], v{ad} offset:{off0 + qt*2048}")
        return L

    def mfmas(c):
        b = c & 1
        L = []
        for s in range(2):
            for T in range(4):
                for qt in range(3):
                    d = ACC + (T * 3 + qt) * 4
                    A = fa(b, s, T); B = fb(b, s, qt)
                    C = "0" if (c == 0 and s == 0) else f"v[{d}:{d+3}]"
                    L.append(f"v_mfma_f32_16x16x32_bf16 v[{d}:{d+3}], a[{A}:{A+3}], a[{B}:{B+3}], {C}")
        return L

    def interleave(M, R):
        n = len(M)
        k = 0
        for i, m in enumerate(M):
            a(m)
            tgt = (len(R) * (i + 1) + n - 1) // n
            while k < min(tgt, len(R)):
                a(R[k]); k += 1
        while k < len(R):
            a(R[k]); k += 1

    a("s_waitcnt lgkmcnt(0)")
    a("s_mul_i32 s52, s52, 0x41C64E6D")
    a("s_add_u32 s52, s52, 0x3039")
    for c in range(10):
        vm.wait(("c", c))
        a("s_barrier")
        if c + 2 < 10:
            issue_chunk(c + 2)
            if c + 2 == 9 and kvpos == "last":
                issue_k(); issue_v()
        elif c == 8:
            issue_wo(5)
        elif c == 9:
            issue_wo(6)
        R = reads(c)
        if c == 0:
            for r in R: a(r)
        else:
            interleave(mfmas(c - 1), R)
        a("s_waitcnt lgkmcnt(0)")
    stamp()
    for m in mfmas(9): a(m)
    a("s_barrier")
    issue_wo(7)
    QF = 160
    SA = 184
    a("s_nop 7")
    for qt in range(3):
        for s in range(2):
            for tt in range(2):
                src = ACC + ((2 * s + tt) * 3 + qt) * 4
                d = QF + (qt * 2 + s) * 4 + tt * 2
                a(f"v_cvt_pk_bf16_f32 v{d}, v{src}, v{src+1}")
                a(f"v_cvt_pk_bf16_f32 v{d+1}, v{src+2}, v{src+3}")
    vm.wait("K")
    a("s_nop 1")
    for qt in range(3):
        for s in range(2):
            for kt in range(3):
                d = SA + (qt * 3 + kt) * 4
                A = KR + (kt * 2 + s) * 4
                B = QF + (qt * 2 + s) * 4
                C = "0" if s == 0 else f"v[{d}:{d+3}]"
                a(f"v_mfma_f32_16x16x32_bf16 v[{d}:{d+3}], v[{A}:{A+3}], v[{B}:{B+3}], {C}")
    issue_wo(2)
    a("s_mul_i32 s54, s3, 9216")
    a("v_lshlrev_b32 v20, 4, v1")
    a("v_add_u32 v21, s54, v20")
    a("s_xor_b32 s55, s3, 1")
    a("s_mul_i32 s55, s55, 9216")
    a("v_add_u32 v23, s55, v20")
    a("s_nop 4")
    for t in range(9):
        r = SA + 4 * t
        a(f"ds_write_b128 v21, v[{r}:{r+3}] offset:{t*1024}")
    a("s_waitcnt lgkmcnt(0)")
    a("s_barrier")
    SB = 32
    for t in range(9):
        r = SB + 4 * t
        a(f"ds_read_b128 v[{r}:{r+3}], v23 offset:{t*1024}")
    issue_wo(3)
    vm.wait("V")
    a("s_mov_b32 s54, 0x05040100")
    a("s_mov_b32 s55, 0x07060302")
    VT32 = 128
    VT16 = 144
    for t in range(4):
        sel = "s54" if t % 2 == 0 else "s55"
        for kt in range(3):
            for m in range(2):
                e0 = VR + (kt * 4 + 2 * m) * 2 + (t >> 1)
                e1 = VR + (kt * 4 + 2 * m + 1) * 2 + (t >> 1)
                d = (VT32 + 4 * t + kt * 2 + m) if kt < 2 else (VT16 + 2 * t + m)
                a(f"v_perm_b32 v{d}, v{e1}, v{e0}, {sel}")
    a("s_waitcnt lgkmcnt(0)")
    a("s_barrier")
    issue_wo(4)
    for r in range(0, 36, 2):
        a(f"v_pk_add_f32 v[{SA+r}:{SA+r+1}], v[{SA+r}:{SA+r+1}], v[{SB+r}:{SB+r+1}]")
    MX = 68
    TM = 72
    for qt in range(3):
        b = SA + qt * 12
        a(f"v_max3_f32 v{MX+qt}, v{b}, v{b+1}, v{b+2}")
    for k in range(3, 11, 2):
        for qt in range(3):
            b = SA + qt * 12
            a(f"v_max3_f32 v{MX+qt}, v{MX+qt}, v{b+k}, v{b+k+1}")
    for qt in range(3):
        b = SA + qt * 12
        a(f"v_max_f32 v{MX+qt}, v{MX+qt}, v{b+11}")
    for sw in ("v_permlane32_swap_b32", "v_permlane16_swap_b32"):
        for qt in range(3):
            a(f"v_mov_b32 v{TM+qt}, v{MX+qt}")
        a("s_nop 1")
        for qt in range(3):
            a(f"{sw} v{MX+qt}, v{TM+qt}")
        a("s_nop 1")
        for qt in range(3):
            a(f"v_max_f32 v{MX+qt}, v{MX+qt}, v{TM+qt}")
    import math, struct
    cexp = math.log2(math.e) / math.sqrt(128.0)
    cbits = struct.unpack("<I", struct.pack("<f", cexp))[0]
    a(f"s_mov_b32 s67, {cbits:#x}")
    for qt in range(3):
        a(f"v_mul_f32 v{MX+qt}, s67, v{MX+qt}")
    issue_wo(0)
    PF = 32
    OA = 80
    LS = 56
    ONE = 76
    for r in range(4):
        a(f"v_mov_b32 v{ONE+r}, 0x3f803f80")
    for qt in range(3):
        b = SA + qt * 12
        for k in range(12):
            a(f"v_fma_f32 v{b+k}, v{b+k}, s67, -v{MX+qt}")
        for k in range(12):
            a(f"v_exp_f32 v{b+k}, v{b+k}")
        a("s_nop 0")
        for k in range(6):
            a(f"v_cvt_pk_bf16_f32 v{PF+qt*8+k}, v{b+2*k}, v{b+2*k+1}")
        a("s_nop 1")
        p32 = PF + qt * 8; p16 = p32 + 4
        d = LS + 4 * qt
        a(f"v_mfma_f32_16x16x32_bf16 v[{d}:{d+3}], v[{ONE}:{ONE+3}], v[{p32}:{p32+3}], 0")
        for t in range(4):
            d = OA + (qt * 4 + t) * 4
            a(f"v_mfma_f32_16x16x32_bf16 v[{d}:{d+3}], v[{VT32+4*t}:{VT32+4*t+3}], v[{p32}:{p32+3}], 0")
        a("s_nop 1")
        d = LS + 4 * qt
        a(f"v_mfma_f32_16x16x16_bf16 v[{d}:{d+3}], v[{ONE}:{ONE+1}], v[{p16}:{p16+1}], v[{d}:{d+3}]")
        for t in range(4):
            d = OA + (qt * 4 + t) * 4
            a(f"v_mfma_f32_16x16x16_bf16 v[{d}:{d+3}], v[{VT16+2*t}:{VT16+2*t+1}], v[{p16}:{p16+1}], v[{d}:{d+3}]")
    a("s_lshl_b32 s54, s5, 5")
    a("s_add_u32 s54, s54, s4")
    a("s_mul_i32 s54, s54, 24576")
    a("s_mul_i32 s55, s59, 12288")
    a("s_add_u32 s54, s54, s55")
    a("s_lshl_b32 s55, s58, 11")
    a("s_add_u32 s54, s54, s55")
    a(f"s_add_u32 s63, s54, {WS_O}")
    OP = 160
    a("s_nop 7")
    for qt in range(3):
        a(f"v_rcp_f32 v{TM+qt}, v{LS+4*qt}")
    a("s_nop 0")
    for qt in range(3):
        for r in range(4):
            for t in range(4):
                x = OA + (qt * 4 + t) * 4 + r
                a(f"v_mul_f32 v{x}, v{x}, v{TM+qt}")
            x0 = OA + (qt * 4 + 0) * 4 + r; x1 = OA + (qt * 4 + 1) * 4 + r
            x2 = OA + (qt * 4 + 2) * 4 + r; x3 = OA + (qt * 4 + 3) * 4 + r
            a(f"v_cvt_pk_bf16_f32 v{OP+8*qt+2*r}, v{x0}, v{x1}")
            a(f"v_cvt_pk_bf16_f32 v{OP+8*qt+2*r+1}, v{x2}, v{x3}")
        a(f"s_add_u32 s54, s63, {qt*4096}")
        for u in range(2):
            r = OP + 8 * qt + 4 * u
            a(f"buffer_store_dwordx4 v[{r}:{r+3}], v20, s[32:35], s54 offen offset:{u*1024} sc1")
            vm.issue("Ost")
    stamp()
    issue_wo(1)
    a("s_lshl_b32 s54, s5, 3")
    a("s_add_u32 s54, s54, s6")
    a("s_lshl_b32 s54, s54, 7")
    a(f"s_add_u32 s64, s54, {WS_FLAG1}")
    a("s_lshl_b32 s55, s7, 2")
    a("s_add_u32 s55, s55, s3")
    a("s_lshl_b32 s55, s55, 2")
    a("v_mov_b32 v21, s55")
    a("v_mov_b32 v23, s52")
    vm.wait("Ost")
    a("s_mov_b64 exec, 1")
    a("buffer_store_dword v23, v21, s[32:35], s64 offen sc1")
    vm.issue("f1")
    a("s_mov_b64 exec, -1")
    stamp()
    a("s_lshl_b32 s54, s5, 5")
    a("s_lshl_b32 s55, s6, 2")
    a("s_add_u32 s54, s54, s55")
    a("s_mul_i32 s54, s54, 24576")
    a("s_mul_i32 s55, s59, 12288")
    a("s_add_u32 s54, s54, s55")
    a(f"s_add_u32 s54, s54, {WS_O}")
    a("v_add_u32 v2, s54, v20")
    a("v_add_u32 v3, 4096, v2")
    a("v_add_u32 v4, 8192, v2")
    a("v_bfe_u32 v21, v1, 2, 2")
    a("v_lshl_add_u32 v21, v22, 4, v21")
    a("v_mul_u32_u24 v21, 320, v21")
    a("v_and_b32 v23, 3, v1")
    a("v_lshl_add_u32 v21, v23, 3, v21")
    a("s_mul_i32 s54, s58, 160")
    a("v_add_u32 v21, s54, v21")
    a("v_and_b32 v23, 1, v22")
    a("v_lshlrev_b32 v23, 5, v23")
    a("v_add_u32 v24, v21, v23")
    a("v_sub_u32 v23, v21, v23")
    a("s_cmp_eq_u32 s58, 0")
    a("s_cselect_b64 vcc, -1, 0")
    a("v_cndmask_b32 v5, v23, v24, vcc")
    a("v_cndmask_b32 v6, v24, v23, vcc")
    a(f"v_add_u32 v7, {3*WOCH}, v5")
    a(f"v_add_u32 v8, {3*WOCH}, v6")
    a(f"v_add_u32 v9, {6*WOCH}, v5")
    a(f"v_add_u32 v10, {6*WOCH}, v6")
    a("v_and_b32 v21, 15, v1")
    a("v_lshlrev_b32 v21, 2, v21")
    a("s_mov_b32 s65, 0")
    a("L_poll1:")
    a("buffer_load_dword v23, v21, s[32:35], s64 offen sc1")
    a("s_add_u32 s65, s65, 1")
    a("s_cmp_ge_u32 s65, 0x100000")
    a("s_cbranch_scc1 L_got1")
    a("s_waitcnt vmcnt(0)")
    a("v_cmp_ne_u32 vcc, s52, v23")
    a("s_cbranch_vccnz L_poll1")
    a("L_got1:")
    a("s_waitcnt vmcnt(0)")
    vm.ops = []
    stamp()
    for m in range(8):
        a(f"s_add_u32 s54, s5, {m}")
        a("s_and_b32 s54, s54, 7")
        a("s_lshr_b32 s55, s54, 1")
        a("s_mul_i32 s55, s55, 24576")
        a("s_and_b32 s54, s54, 1")
        a("s_lshl_b32 s54, s54, 11")
        a("s_add_u32 s54, s54, s55")
        for u in range(2):
            for qt in range(3):
                r = ((2 * m + u) * 3 + qt) * 4
                a(f"buffer_load_dwordx4 a[{r}:{r+3}], v{2+qt}, s[32:35], s54 offen offset:{u*1024} sc1")
                vm.issue(("O", 2 * m + u))
    a("s_barrier")
    ACC2 = 32
    WF = 96
    def wreads(ks):
        m, u = ks >> 1, ks & 1
        b = ks % 3
        L = []
        for nt in range(5):
            ad = 5 + 2 * (m // 3) + (nt & 1)
            for hf in range(2):
                r = WF + b * 20 + nt * 4 + 2 * hf
                off = (m % 3) * WOCH + (8 * u + 4 * hf) * 320 + 32 * nt
                L.append(f"ds_read_b64_tr_b16 v[{r}:{r+1}], v{ad} offset:{off}")
        return L
    def mf2(ks):
        b = ks % 3
        L = []
        for nt in range(5):
            for qt in range(3):
                d = ACC2 + (nt * 3 + qt) * 4
                A = WF + b * 20 + nt * 4
                B = (ks * 3 + qt) * 4
                C = "0" if ks == 0 else f"v[{d}:{d+3}]"
                L.append(f"v_mfma_f32_16x16x32_bf16 v[{d}:{d+3}], v[{A}:{A+3}], a[{B}:{B+3}], {C}")
        return L
    for r in wreads(0): a(r)
    for ks in range(16):
        a("s_waitcnt lgkmcnt(0)")
        vm.wait(("O", ks))
        interleave(mf2(ks), wreads(ks + 1) if ks + 1 < 16 else [])
    stamp()
    a("s_lshl_b32 s54, s5, 2")
    a("s_add_u32 s54, s54, s7")
    a("s_lshl_b32 s55, s54, 7")
    a(f"s_add_u32 s64, s55, {WS_FLAG2}")
    a("s_mul_i32 s54, s54, 491520")
    a(f"s_add_u32 s66, s54, {WS_PART}")
    a("s_mul_i32 s55, s6, 61440")
    a("s_add_u32 s54, s66, s55")
    a("s_mul_i32 s55, s59, 30720")
    a("s_add_u32 s54, s54, s55")
    a("s_mul_i32 s55, s58, 320")
    a("s_add_u32 s54, s54, s55")
    a("v_and_b32 v21, 15, v1")
    a("v_mul_u32_u24 v21, 640, v21")
    a("v_lshl_add_u32 v21, v22, 4, v21")
    for qt in range(3):
        a(f"s_add_u32 s55, s54, {qt*10240}")
        for nt in range(5):
            d = ACC2 + (nt * 3 + qt) * 4
            a(f"buffer_store_dwordx4 v[{d}:{d+3}], v21, s[32:35], s55 offen offset:{nt*64} sc1")
    a("s_lshl_b32 s55, s6, 2")
    a("s_add_u32 s55, s55, s3")
    a("s_lshl_b32 s55, s55, 2")
    a("v_mov_b32 v21, s55")
    a("v_mov_b32 v23, s52")
    a("s_waitcnt vmcnt(0)")
    a("s_mov_b64 exec, 1")
    a("buffer_store_dword v23, v21, s[32:35], s64 offen sc1")
    a("s_mov_b64 exec, -1")
    stamp()
    a("v_lshlrev_b32 v2, 5, v0")
    a("s_mul_i32 s54, s6, 7680")
    a("v_add_u32 v2, s54, v2")
    a("v_mul_u32_u24 v3, 52429, v0")
    a("v_lshrrev_b32 v3, 20, v3")
    a("v_mul_u32_u24 v4, 20, v3")
    a("v_sub_u32 v4, v0, v4")
    a("s_mul_i32 s54, s5, 96")
    a("s_mul_i32 s55, s6, 12")
    a("s_add_u32 s54, s54, s55")
    a("v_add_u32 v3, s54, v3")
    a("v_mul_u32_u24 v3, 1280, v3")
    a("v_lshl_add_u32 v3, v4, 4, v3")
    a("s_mul_i32 s54, s7, 320")
    a("v_add_u32 v3, s54, v3")
    a("v_and_b32 v21, 31, v1")
    a("v_lshlrev_b32 v21, 2, v21")
    a("s_mov_b32 s65, 0")
    a("L_poll2:")
    a("buffer_load_dword v23, v21, s[32:35], s64 offen sc1")
    a("s_add_u32 s65, s65, 1")
    a("s_cmp_ge_u32 s65, 0x100000")
    a("s_cbranch_scc1 L_got2")
    a("s_waitcnt vmcnt(0)")
    a("v_cmp_ne_u32 vcc, s52, v23")
    a("s_cbranch_vccnz L_poll2")
    a("L_got2:")
    a("s_waitcnt vmcnt(0)")
    stamp()
    a("v_cmp_gt_u32 vcc, 240, v0")
    a("s_and_saveexec_b64 s[54:55], vcc")
    for src in range(8):
        a(f"s_add_u32 s56, s66, {src*61440}")
        r = 32 + 8 * src
        a(f"buffer_load_dwordx4 v[{r}:{r+3}], v2, s[32:35], s56 offen sc1")
        a(f"buffer_load_dwordx4 v[{r+4}:{r+7}], v2, s[32:35], s56 offen offset:16 sc1")
    for src in range(1, 8):
        a(f"s_waitcnt vmcnt({14 - 2*src})")
        r = 32 + 8 * src
        for k in range(0, 8, 2):
            a(f"v_pk_add_f32 v[{32+k}:{33+k}], v[{32+k}:{33+k}], v[{r+k}:{r+k+1}]")
    for k in range(4):
        a(f"v_cvt_pk_bf16_f32 v{24+k}, v{32+2*k}, v{33+2*k}")
    a("buffer_store_dwordx4 v[24:27], v3, s[28:31], 0 offen")
    a("s_mov_b64 exec, -1")
    a("s_and_b32 s54, s2, 31")
    a("s_or_b32 s54, s54, s3")
    a("s_cmp_lg_u32 s54, 0")
    a("s_cbranch_scc1 L_noep")
    a("s_lshl_b32 s54, s5, 7")
    a("v_mov_b32 v21, 0")
    a("v_mov_b32 v23, s52")
    a("s_mov_b64 exec, 1")
    a("buffer_store_dword v23, v21, s[32:35], s54 offen sc1")
    a("s_mov_b64 exec, -1")
    a("L_noep:")
    if stamps:
        a("s_waitcnt vmcnt(0)")
        stamp()
        a("s_waitcnt lgkmcnt(0)")
        a("s_cmp_lg_u32 s3, 0")
        a("s_cbranch_scc1 L_end")
        a("s_lshl_b32 s54, s2, 8")
        a(f"s_add_u32 s54, s54, {WS_STAMP}")
        a("v_mov_b32 v5, 0")
        a("s_mov_b64 exec, 1")
        for i in range(nstamp[0]):
            r = 70 + 2 * i
            a(f"v_mov_b32 v6, s{r}")
            a(f"v_mov_b32 v7, s{r+1}")
            a(f"buffer_store_dwordx2 v[6:7], v5, s[32:35], s54 offen offset:{8*i}")
            a("s_nop 1")
    a("L_end:")
    a("s_endpgm")
    txt = HEADER_COMMENTS + f"; @launch grid=(256,1,1) block=(256,1,1) lds={LDS_TOTAL}\n" + a.text()
    txt += '.section .rodata,"a"\n' + kernel_desc(name, 512, 102, 256)
    open(out, "w").write(txt)
    return nstamp[0]

if __name__ == "__main__":
    n = gen("k1.s", stamps=False)
    n = gen("k1s.s", stamps=True)
    print("stamps", n)
```

```python
import sys, argparse
from asmgen import *

WS_EPOCH = 0x0
WS_FLAG1 = 0x1000
WS_FLAG2 = 0x4000
WS_O     = 0x100000
WS_PART  = 0x800000
WS_STAMP = 0x8000000

SLOT = [0, 36864, 65536]
XB = 12288
WOCH = 20480
LDS_TOTAL = 163840


class VM:
    def __init__(self, a):
        self.a = a
        self.ops = []
    def issue(self, tag):
        self.ops.append(tag)
    def wait(self, tag):
        idx = max(i for i, t in enumerate(self.ops) if t == tag)
        n = len(self.ops) - 1 - idx
        assert n <= 63, n
        self.a(f"s_waitcnt vmcnt({n})")
    def wait_all(self):
        self.a("s_waitcnt vmcnt(0)")


def gen(out, stamps=False, ntx=True, kvpos="last", dbg=False):
    a = Asm()
    vm = VM(a)
    name = NAME + "_kernel"
    nstamp = [0]
    def stamp():
        if not stamps:
            return
        r = 70 + 2 * nstamp[0]
        assert r + 1 <= 101
        nstamp[0] += 1
        a(f"s_memrealtime s[{r}:{r+1}]")

    a('.amdgcn_target "amdgcn-amd-amdhsa--gfx950"')
    a(".text")
    kernel_begin(a, name)
    a("s_cmp_ge_u32 s2, 256")
    a("s_cbranch_scc1 L_end")
    stamp()
    a("s_load_dwordx16 s[36:51], s[0:1], 0")
    sW, sH, sP, sJ, sI = "s3", "s4", "s5", "s6", "s7"
    a("v_lshrrev_b32 v2, 6, v0")
    a("v_and_b32 v1, 63, v0")
    a("s_and_b32 s6, s2, 7")
    a("v_readfirstlane_b32 s3, v2")
    a("s_lshr_b32 s7, s2, 3")
    a("s_and_b32 s7, s7, 3")
    a("s_lshr_b32 s5, s2, 5")
    a("s_lshl_b32 s4, s6, 2")
    a("s_add_u32 s4, s4, s7")
    a("s_mul_i32 s53, s7, 3")
    a("s_add_u32 s53, s53, s5")
    a("s_add_u32 s53, s53, s6")
    for _ in range(2):
        a("s_cmp_ge_u32 s53, 10")
        a("s_cselect_b32 s54, 10, 0")
        a("s_sub_u32 s53, s53, s54")
    sDH, sBB = "s58", "s59"
    a("s_and_b32 s58, s3, 1")
    a("s_lshr_b32 s59, s3, 1")

    vL = "v1"
    a("v_lshrrev_b32 v20, 3, v1")
    a("v_and_b32 v21, 7, v1")
    a("v_lshrrev_b32 v22, 4, v1")
    a("v_xor_b32 v21, v21, v22")
    a("s_mul_i32 s54, s5, 96")
    a("s_mul_i32 s55, s3, 24")
    a("s_add_u32 s54, s54, s55")
    a("v_add_u32 v20, s54, v20")
    a("v_mul_u32_u24 v20, 1280, v20")
    a("s_lshl_b32 s55, s58, 2")
    a("v_xor_b32 v23, s55, v21")
    a("v_xor_b32 v24, 4, v23")
    a("v_lshl_add_u32 v2, v23, 4, v20")
    a("v_lshl_add_u32 v3, v24, 4, v20")
    a(f"v_add_u32 v3, {10240-1024}, v3")
    a(f"v_add_u32 v4, {2*(10240-1024)}, v2")
    a("v_and_b32 v20, 15, v1")
    a("v_lshlrev_b32 v21, 1, v22")
    a("v_xor_b32 v20, v20, v21")
    a("s_lshl_b32 s54, s3, 4")
    a("v_add_u32 v21, s54, v22")
    a("v_lshlrev_b32 v21, 13, v21")
    a("s_lshl_b32 s54, s4, 8")
    a("v_add_u32 v21, s54, v21")
    a("v_lshl_add_u32 v5, v20, 4, v21")
    a(f"v_add_u32 v6, {32768-1024}, v5")
    a("v_xor_b32 v20, 8, v20")
    a("v_lshl_add_u32 v7, v20, 4, v21")
    a(f"v_add_u32 v7, {2*(32768-1024)}, v7")
    a(f"v_add_u32 v8, {32768-1024}, v7")
    a("s_mul_i32 s56, s3, 3072")
    a("s_lshl_b32 s57, s3, 12")
    a(f"s_add_u32 s57, s57, {XB}")
    a("s_waitcnt lgkmcnt(0)")
    srd(a, 8, 36, X_BYTES)
    srd(a, 20, 42, WQ_BYTES)
    fx = " nt" if ntx else ""

    def issue_chunk(c):
        sl = SLOT[c % 3]
        a("s_lshl_b32 s54, s53, 7")
        a(f"s_add_u32 m0, s56, {sl}")
        a("s_lshl_b32 s55, s53, 19")
        for i in range(3):
            a(f"buffer_load_dwordx4 v{2+i}, s[8:11], s54 offen offset:{i*1024}{fx} lds")
            vm.issue(("c", c))
        a(f"s_add_u32 m0, s57, {sl}")
        a("s_add_u32 s53, s53, 1")
        for i in range(4):
            a(f"buffer_load_dwordx4 v{5+i}, s[20:23], s55 offen offset:{i*1024} nt lds")
            vm.issue(("c", c))
        a("s_cmp_ge_u32 s53, 10")
        a("s_cselect_b32 s53, 0, s53")

    issue_chunk(0)
    issue_chunk(1)
    srd(a, 12, 38, KV_BYTES)
    srd(a, 16, 40, KV_BYTES)
    srd(a, 24, 44, WO_BYTES)
    srd(a, 28, 46, OUT_BYTES)
    srd(a, 32, 50, WS_BYTES)
    a("s_lshl_b32 s54, s5, 7")
    a("s_load_dword s52, s[50:51], s54")

    a("v_and_b32 v20, 15, v1")
    a("v_lshrrev_b32 v21, 1, v20")
    a("v_xor_b32 v21, v21, v22")
    a("s_mul_i32 s54, s59, 48")
    a("v_add_u32 v20, s54, v20")
    a("v_lshlrev_b32 v20, 7, v20")
    a("v_lshl_add_u32 v9, v21, 4, v20")
    a("v_xor_b32 v10, 64, v9")
    a("v_add_u32 v11, 0x10000, v9")
    a("v_add_u32 v12, 0x10000, v10")
    a("v_bfe_u32 v20, v1, 2, 2")
    a("v_and_b32 v21, 1, v22")
    a("v_lshl_or_b32 v21, v21, 2, v20")
    a("s_lshl_b32 s54, s58, 2")
    a("v_xor_b32 v21, s54, v21")
    a("v_lshl_add_u32 v23, v22, 3, v20")
    a("v_lshlrev_b32 v23, 8, v23")
    a("v_and_b32 v24, 3, v1")
    a("v_lshl_add_u32 v23, v24, 3, v23")
    a(f"v_add_u32 v23, {XB}, v23")
    WQA = [13, 14, 15, 16]; WQA_HI = [17, 18, 19, 25]
    for T in range(4):
        a(f"v_xor_b32 v24, {T}, v21")
        a(f"v_lshl_add_u32 v{WQA[T]}, v24, 5, v23")
        a(f"v_add_u32 v{WQA_HI[T]}, 0x10000, v{WQA[T]}")
    a("s_lshl_b32 s54, s5, 1")
    a("s_add_u32 s54, s54, s59")
    a("s_lshl_b32 s54, s54, 5")
    a("s_add_u32 s54, s54, s4")
    a("s_mul_i32 s54, s54, 12288")
    a("s_lshl_b32 s55, s58, 7")
    a("s_add_u32 s60, s54, s55")
    a("v_and_b32 v20, 15, v1")
    a("v_lshlrev_b32 v21, 8, v20")
    a("v_lshl_add_u32 v26, v22, 3, v21")
    a("v_lshlrev_b32 v21, 10, v22")
    a("v_lshl_add_u32 v27, v20, 3, v21")

    ACC = 32
    KR = 80
    VR = 104
    VT = 128
    def fa(b, s, T): return b * 56 + (s * 4 + T) * 4
    def fb(b, s, qt): return b * 56 + 32 + (s * 3 + qt) * 4

    def issue_k():
        for kt in range(3):
            a(f"s_add_u32 s54, s60, {kt*4096}")
            for s in range(2):
                for hf in range(2):
                    r = KR + (kt * 2 + s) * 4 + hf * 2
                    a(f"buffer_load_dwordx2 v[{r}:{r+1}], v26, s[12:15], s54 offen offset:{s*64 + hf*32} nt")
                    vm.issue("K")
    def issue_v():
        for kt in range(3):
            a(f"s_add_u32 s54, s60, {kt*4096}")
            for e in range(4):
                r = VR + (kt * 4 + e) * 2
                a(f"buffer_load_dwordx2 v[{r}:{r+1}], v27, s[16:19], s54 offen offset:{e*256} nt")
                vm.issue("V")

    WOV = 152
    for i in range(5):
        a(f"v_add_u32 v20, {64*i}, v1")
        a("v_mul_u32_u24 v21, 52429, v20")
        a("v_lshrrev_b32 v21, 20, v21")
        a("v_mul_u32_u24 v23, 20, v21")
        a("v_sub_u32 v20, v20, v23")
        a("s_lshl_b32 s54, s58, 1")
        a("v_xor_b32 v20, s54, v20")
        a("s_lshl_b32 s54, s3, 4")
        a("v_add_u32 v21, s54, v21")
        a("v_mul_u32_u24 v21, 1280, v21")
        a(f"v_lshl_add_u32 v{WOV+i}, v20, 4, v21")
        if 0 < i < 4:
            a(f"v_subrev_u32 v{WOV+i}, {1024*i}, v{WOV+i}")
    a("s_mul_i32 s61, s6, 655360")
    a("s_mul_i32 s54, s7, 320")
    a("s_add_u32 s61, s61, s54")
    a("s_mul_i32 s62, s3, 5120")

    def issue_wo(m, part=None):
        rng = range(5) if part is None else part
        a(f"s_add_u32 s54, s5, {m}")
        a("s_and_b32 s54, s54, 7")
        a("s_mul_i32 s54, s54, 81920")
        a("s_add_u32 s54, s54, s61")
        a(f"s_add_u32 m0, s62, {m*WOCH}")
        for i in rng:
            if i == 4:
                a(f"s_add_u32 m0, s62, {m*WOCH + 4096}")
                a("s_nop 0")
                a(f"buffer_load_dwordx4 v{WOV+i}, s[24:27], s54 offen nt lds")
            else:
                if i == 0:
                    a("s_nop 0")
                a(f"buffer_load_dwordx4 v{WOV+i}, s[24:27], s54 offen offset:{i*1024} nt lds")
            vm.issue(("wo", m))

    if kvpos == "first":
        issue_k(); issue_v()

    def reads(c):
        b = c & 1
        sl = SLOT[c % 3]
        hi = sl >= 65536
        off0 = sl - (65536 if hi else 0)
        L = []
        for s in range(2):
            for T in range(4):
                ad = (WQA_HI if hi else WQA)[T]
                for hf in range(2):
                    r = fa(b, s, T) + 2 * hf
                    L.append(f"ds_read_b64_tr_b16 a[{r}:{r+1}], v{ad} offset:{off0 + (32*s + 4*hf)*256}")
            for qt in range(3):
                ad = (11 if hi else 9) + s
                r = fb(b, s, qt)
                L.append(f"ds_read_b128 a[{r}:{r+3}], v{ad} offset:{off0 + qt*2048}")
        return L

    def mfmas(c):
        b = c & 1
        L = []
        for s in range(2):
            for T in range(4):
                for qt in range(3):
                    d = ACC + (T * 3 + qt) * 4
                    A = fa(b, s, T); B = fb(b, s, qt)
                    C = "0" if (c == 0 and s == 0) else f"v[{d}:{d+3}]"
                    L.append(f"v_mfma_f32_16x16x32_bf16 v[{d}:{d+3}], a[{A}:{A+3}], a[{B}:{B+3}], {C}")
        return L

    def interleave(M, R):
        n = len(M)
        k = 0
        for i, m in enumerate(M):
            a(m)
            tgt = (len(R) * (i + 1) + n - 1) // n
            while k < min(tgt, len(R)):
                a(R[k]); k += 1
        while k < len(R):
            a(R[k]); k += 1

    a("s_waitcnt lgkmcnt(0)")
    a("s_mul_i32 s52, s52, 0x41C64E6D")
    a("s_add_u32 s52, s52, 0x3039")
    for c in range(10):
        vm.wait(("c", c))
        a("s_barrier")
        if c + 2 < 10:
            issue_chunk(c + 2)
            if c + 2 == 9 and kvpos == "last":
                issue_k(); issue_v()
        elif c == 8:
            issue_wo(5)
        elif c == 9:
            issue_wo(6)
        R = reads(c)
        if c == 0:
            for r in R: a(r)
        else:
            interleave(mfmas(c - 1), R)
        a("s_waitcnt lgkmcnt(0)")
    stamp()
    for m in mfmas(9): a(m)
    a("s_barrier")
    issue_wo(7)
    QF = 160
    SA = 184
    a("s_nop 7")
    for qt in range(3):
        for s in range(2):
            for tt in range(2):
                src = ACC + ((2 * s + tt) * 3 + qt) * 4
                d = QF + (qt * 2 + s) * 4 + tt * 2
                a(f"v_cvt_pk_bf16_f32 v{d}, v{src}, v{src+1}")
                a(f"v_cvt_pk_bf16_f32 v{d+1}, v{src+2}, v{src+3}")
    vm.wait("K")
    a("s_nop 1")
    for qt in range(3):
        for s in range(2):
            for kt in range(3):
                d = SA + (qt * 3 + kt) * 4
                A = KR + (kt * 2 + s) * 4
                B = QF + (qt * 2 + s) * 4
                C = "0" if s == 0 else f"v[{d}:{d+3}]"
                a(f"v_mfma_f32_16x16x32_bf16 v[{d}:{d+3}], v[{A}:{A+3}], v[{B}:{B+3}], {C}")
    issue_wo(2)
    a("s_mul_i32 s54, s3, 9216")
    a("v_lshlrev_b32 v20, 4, v1")
    a("v_add_u32 v21, s54, v20")
    a("s_xor_b32 s55, s3, 1")
    a("s_mul_i32 s55, s55, 9216")
    a("v_add_u32 v23, s55, v20")
    a("s_nop 4")
    for t in range(9):
        r = SA + 4 * t
        a(f"ds_write_b128 v21, v[{r}:{r+3}] offset:{t*1024}")
    a("s_waitcnt lgkmcnt(0)")
    a("s_barrier")
    SB = 32
    for t in range(9):
        r = SB + 4 * t
        a(f"ds_read_b128 v[{r}:{r+3}], v23 offset:{t*1024}")
    issue_wo(3)
    vm.wait("V")
    a("s_mov_b32 s54, 0x05040100")
    a("s_mov_b32 s55, 0x07060302")
    VT32 = 128
    VT16 = 144
    for t in range(4):
        sel = "s54" if t % 2 == 0 else "s55"
        for kt in range(3):
            for m in range(2):
                e0 = VR + (kt * 4 + 2 * m) * 2 + (t >> 1)
                e1 = VR + (kt * 4 + 2 * m + 1) * 2 + (t >> 1)
                d = (VT32 + 4 * t + kt * 2 + m) if kt < 2 else (VT16 + 2 * t + m)
                a(f"v_perm_b32 v{d}, v{e1}, v{e0}, {sel}")
    a("s_waitcnt lgkmcnt(0)")
    a("s_barrier")
    issue_wo(4)
    for r in range(0, 36, 2):
        a(f"v_pk_add_f32 v[{SA+r}:{SA+r+1}], v[{SA+r}:{SA+r+1}], v[{SB+r}:{SB+r+1}]")
    MX = 68
    TM = 72
    for qt in range(3):
        b = SA + qt * 12
        a(f"v_max3_f32 v{MX+qt}, v{b}, v{b+1}, v{b+2}")
    for k in range(3, 11, 2):
        for qt in range(3):
            b = SA + qt * 12
            a(f"v_max3_f32 v{MX+qt}, v{MX+qt}, v{b+k}, v{b+k+1}")
    for qt in range(3):
        b = SA + qt * 12
        a(f"v_max_f32 v{MX+qt}, v{MX+qt}, v{b+11}")
    for sw in ("v_permlane32_swap_b32", "v_permlane16_swap_b32"):
        for qt in range(3):
            a(f"v_mov_b32 v{TM+qt}, v{MX+qt}")
        a("s_nop 1")
        for qt in range(3):
            a(f"{sw} v{MX+qt}, v{TM+qt}")
        a("s_nop 1")
        for qt in range(3):
            a(f"v_max_f32 v{MX+qt}, v{MX+qt}, v{TM+qt}")
    import math, struct
    cexp = math.log2(math.e) / math.sqrt(128.0)
    cbits = struct.unpack("<I", struct.pack("<f", cexp))[0]
    a(f"s_mov_b32 s67, {cbits:#x}")
    for qt in range(3):
        a(f"v_mul_f32 v{MX+qt}, s67, v{MX+qt}")
    issue_wo(0)
    PF = 32
    OA = 80
    LS = 56
    ONE = 76
    for r in range(4):
        a(f"v_mov_b32 v{ONE+r}, 0x3f803f80")
    for qt in range(3):
        b = SA + qt * 12
        for k in range(12):
            a(f"v_fma_f32 v{b+k}, v{b+k}, s67, -v{MX+qt}")
        for k in range(12):
            a(f"v_exp_f32 v{b+k}, v{b+k}")
        a("s_nop 0")
        for k in range(6):
            a(f"v_cvt_pk_bf16_f32 v{PF+qt*8+k}, v{b+2*k}, v{b+2*k+1}")
        a("s_nop 1")
        p32 = PF + qt * 8; p16 = p32 + 4
        d = LS + 4 * qt
        a(f"v_mfma_f32_16x16x32_bf16 v[{d}:{d+3}], v[{ONE}:{ONE+3}], v[{p32}:{p32+3}], 0")
        for t in range(4):
            d = OA + (qt * 4 + t) * 4
            a(f"v_mfma_f32_16x16x32_bf16 v[{d}:{d+3}], v[{VT32+4*t}:{VT32+4*t+3}], v[{p32}:{p32+3}], 0")
        a("s_nop 1")
        d = LS + 4 * qt
        a(f"v_mfma_f32_16x16x16_bf16 v[{d}:{d+3}], v[{ONE}:{ONE+1}], v[{p16}:{p16+1}], v[{d}:{d+3}]")
        for t in range(4):
            d = OA + (qt * 4 + t) * 4
            a(f"v_mfma_f32_16x16x16_bf16 v[{d}:{d+3}], v[{VT16+2*t}:{VT16+2*t+1}], v[{p16}:{p16+1}], v[{d}:{d+3}]")
    a("s_lshl_b32 s54, s5, 5")
    a("s_add_u32 s54, s54, s4")
    a("s_mul_i32 s54, s54, 24576")
    a("s_mul_i32 s55, s59, 12288")
    a("s_add_u32 s54, s54, s55")
    a("s_lshl_b32 s55, s58, 11")
    a("s_add_u32 s54, s54, s55")
    a(f"s_add_u32 s63, s54, {WS_O}")
    OP = 160
    a("s_nop 7")
    for qt in range(3):
        a(f"v_rcp_f32 v{TM+qt}, v{LS+4*qt}")
    a("s_nop 0")
    for qt in range(3):
        for r in range(4):
            for t in range(4):
                x = OA + (qt * 4 + t) * 4 + r
                a(f"v_mul_f32 v{x}, v{x}, v{TM+qt}")
            x0 = OA + (qt * 4 + 0) * 4 + r; x1 = OA + (qt * 4 + 1) * 4 + r
            x2 = OA + (qt * 4 + 2) * 4 + r; x3 = OA + (qt * 4 + 3) * 4 + r
            a(f"v_cvt_pk_bf16_f32 v{OP+8*qt+2*r}, v{x0}, v{x1}")
            a(f"v_cvt_pk_bf16_f32 v{OP+8*qt+2*r+1}, v{x2}, v{x3}")
        a(f"s_add_u32 s54, s63, {qt*4096}")
        for u in range(2):
            r = OP + 8 * qt + 4 * u
            a(f"buffer_store_dwordx4 v[{r}:{r+3}], v20, s[32:35], s54 offen offset:{u*1024} sc1")
            vm.issue("Ost")
    stamp()
    issue_wo(1)
    a("s_lshl_b32 s54, s5, 3")
    a("s_add_u32 s54, s54, s6")
    a("s_lshl_b32 s54, s54, 7")
    a(f"s_add_u32 s64, s54, {WS_FLAG1}")
    a("s_lshl_b32 s55, s7, 2")
    a("s_add_u32 s55, s55, s3")
    a("s_lshl_b32 s55, s55, 2")
    a("v_mov_b32 v21, s55")
    a("v_mov_b32 v23, s52")
    vm.wait("Ost")
    a("s_mov_b64 exec, 1")
    a("buffer_store_dword v23, v21, s[32:35], s64 offen sc1")
    vm.issue("f1")
    a("s_mov_b64 exec, -1")
    stamp()
    a("s_lshl_b32 s54, s5, 5")
    a("s_lshl_b32 s55, s6, 2")
    a("s_add_u32 s54, s54, s55")
    a("s_mul_i32 s54, s54, 24576")
    a("s_mul_i32 s55, s59, 12288")
    a("s_add_u32 s54, s54, s55")
    a(f"s_add_u32 s54, s54, {WS_O}")
    a("v_add_u32 v2, s54, v20")
    a("v_add_u32 v3, 4096, v2")
    a("v_add_u32 v4, 8192, v2")
    a("v_bfe_u32 v21, v1, 2, 2")
    a("v_lshl_add_u32 v21, v22, 4, v21")
    a("v_mul_u32_u24 v21, 320, v21")
    a("v_and_b32 v23, 3, v1")
    a("v_lshl_add_u32 v21, v23, 3, v21")
    a("s_mul_i32 s54, s58, 160")
    a("v_add_u32 v21, s54, v21")
    a("v_and_b32 v23, 1, v22")
    a("v_lshlrev_b32 v23, 5, v23")
    a("v_add_u32 v24, v21, v23")
    a("v_sub_u32 v23, v21, v23")
    a("s_cmp_eq_u32 s58, 0")
    a("s_cselect_b64 vcc, -1, 0")
    a("v_cndmask_b32 v5, v23, v24, vcc")
    a("v_cndmask_b32 v6, v24, v23, vcc")
    a(f"v_add_u32 v7, {3*WOCH}, v5")
    a(f"v_add_u32 v8, {3*WOCH}, v6")
    a(f"v_add_u32 v9, {6*WOCH}, v5")
    a(f"v_add_u32 v10, {6*WOCH}, v6")
    a("v_and_b32 v21, 15, v1")
    a("v_lshlrev_b32 v21, 2, v21")
    a("s_mov_b32 s65, 0")
    a("L_poll1:")
    a("buffer_load_dword v23, v21, s[32:35], s64 offen sc1")
    a("s_add_u32 s65, s65, 1")
    a("s_cmp_ge_u32 s65, 0x100000")
    a("s_cbranch_scc1 L_got1")
    a("s_waitcnt vmcnt(0)")
    a("v_cmp_ne_u32 vcc, s52, v23")
    a("s_cbranch_vccnz L_poll1")
    a("L_got1:")
    a("s_waitcnt vmcnt(0)")
    vm.ops = []
    stamp()
    for m in range(8):
        a(f"s_add_u32 s54, s5, {m}")
        a("s_and_b32 s54, s54, 7")
        a("s_lshr_b32 s55, s54, 1")
        a("s_mul_i32 s55, s55, 24576")
        a("s_and_b32 s54, s54, 1")
        a("s_lshl_b32 s54, s54, 11")
        a("s_add_u32 s54, s54, s55")
        for u in range(2):
            for qt in range(3):
                r = ((2 * m + u) * 3 + qt) * 4
                a(f"buffer_load_dwordx4 a[{r}:{r+3}], v{2+qt}, s[32:35], s54 offen offset:{u*1024} sc1")
                vm.issue(("O", 2 * m + u))
    a("s_barrier")
    ACC2 = 32
    WF = 96
    def wreads(ks):
        m, u = ks >> 1, ks & 1
        b = ks % 3
        L = []
        for nt in range(5):
            ad = 5 + 2 * (m // 3) + (nt & 1)
            for hf in range(2):
                r = WF + b * 20 + nt * 4 + 2 * hf
                off = (m % 3) * WOCH + (8 * u + 4 * hf) * 320 + 32 * nt
                L.append(f"ds_read_b64_tr_b16 v[{r}:{r+1}], v{ad} offset:{off}")
        return L
    def mf2(ks):
        b = ks % 3
        L = []
        for nt in range(5):
            for qt in range(3):
                d = ACC2 + (nt * 3 + qt) * 4
                A = WF + b * 20 + nt * 4
                B = (ks * 3 + qt) * 4
                C = "0" if ks == 0 else f"v[{d}:{d+3}]"
                L.append(f"v_mfma_f32_16x16x32_bf16 v[{d}:{d+3}], v[{A}:{A+3}], a[{B}:{B+3}], {C}")
        return L
    for r in wreads(0): a(r)
    for ks in range(16):
        a("s_waitcnt lgkmcnt(0)")
        vm.wait(("O", ks))
        interleave(mf2(ks), wreads(ks + 1) if ks + 1 < 16 else [])
    stamp()
    a("s_lshl_b32 s54, s5, 2")
    a("s_add_u32 s54, s54, s7")
    a("s_lshl_b32 s55, s54, 7")
    a(f"s_add_u32 s64, s55, {WS_FLAG2}")
    a("s_mul_i32 s54, s54, 491520")
    a(f"s_add_u32 s66, s54, {WS_PART}")
    a("s_mul_i32 s55, s6, 61440")
    a("s_add_u32 s54, s66, s55")
    a("s_mul_i32 s55, s59, 30720")
    a("s_add_u32 s54, s54, s55")
    a("s_mul_i32 s55, s58, 320")
    a("s_add_u32 s54, s54, s55")
    a("v_and_b32 v21, 15, v1")
    a("v_mul_u32_u24 v21, 640, v21")
    a("v_lshl_add_u32 v21, v22, 4, v21")
    for qt in range(3):
        a(f"s_add_u32 s55, s54, {qt*10240}")
        for nt in range(5):
            d = ACC2 + (nt * 3 + qt) * 4
            a(f"buffer_store_dwordx4 v[{d}:{d+3}], v21, s[32:35], s55 offen offset:{nt*64} sc1")
    a("s_lshl_b32 s55, s6, 2")
    a("s_add_u32 s55, s55, s3")
    a("s_lshl_b32 s55, s55, 2")
    a("v_mov_b32 v21, s55")
    a("v_mov_b32 v23, s52")
    a("s_waitcnt vmcnt(0)")
    a("s_mov_b64 exec, 1")
    a("buffer_store_dword v23, v21, s[32:35], s64 offen sc1")
    a("s_mov_b64 exec, -1")
    stamp()
    a("v_lshlrev_b32 v2, 5, v0")
    a("s_mul_i32 s54, s6, 7680")
    a("v_add_u32 v2, s54, v2")
    a("v_mul_u32_u24 v3, 52429, v0")
    a("v_lshrrev_b32 v3, 20, v3")
    a("v_mul_u32_u24 v4, 20, v3")
    a("v_sub_u32 v4, v0, v4")
    a("s_mul_i32 s54, s5, 96")
    a("s_mul_i32 s55, s6, 12")
    a("s_add_u32 s54, s54, s55")
    a("v_add_u32 v3, s54, v3")
    a("v_mul_u32_u24 v3, 1280, v3")
    a("v_lshl_add_u32 v3, v4, 4, v3")
    a("s_mul_i32 s54, s7, 320")
    a("v_add_u32 v3, s54, v3")
    a("v_and_b32 v21, 31, v1")
    a("v_lshlrev_b32 v21, 2, v21")
    a("s_mov_b32 s65, 0")
    a("L_poll2:")
    a("buffer_load_dword v23, v21, s[32:35], s64 offen sc1")
    a("s_add_u32 s65, s65, 1")
    a("s_cmp_ge_u32 s65, 0x100000")
    a("s_cbranch_scc1 L_got2")
    a("s_waitcnt vmcnt(0)")
    a("v_cmp_ne_u32 vcc, s52, v23")
    a("s_cbranch_vccnz L_poll2")
    a("L_got2:")
    a("s_waitcnt vmcnt(0)")
    stamp()
    a("v_cmp_gt_u32 vcc, 240, v0")
    a("s_and_saveexec_b64 s[54:55], vcc")
    for src in range(8):
        a(f"s_add_u32 s56, s66, {src*61440}")
        r = 32 + 8 * src
        a(f"buffer_load_dwordx4 v[{r}:{r+3}], v2, s[32:35], s56 offen sc1")
        a(f"buffer_load_dwordx4 v[{r+4}:{r+7}], v2, s[32:35], s56 offen offset:16 sc1")
    for src in range(1, 8):
        a(f"s_waitcnt vmcnt({14 - 2*src})")
        r = 32 + 8 * src
        for k in range(0, 8, 2):
            a(f"v_pk_add_f32 v[{32+k}:{33+k}], v[{32+k}:{33+k}], v[{r+k}:{r+k+1}]")
    for k in range(4):
        a(f"v_cvt_pk_bf16_f32 v{24+k}, v{32+2*k}, v{33+2*k}")
    a("buffer_store_dwordx4 v[24:27], v3, s[28:31], 0 offen")
    a("s_mov_b64 exec, -1")
    a("s_and_b32 s54, s2, 31")
    a("s_or_b32 s54, s54, s3")
    a("s_cmp_lg_u32 s54, 0")
    a("s_cbranch_scc1 L_noep")
    a("s_lshl_b32 s54, s5, 7")
    a("v_mov_b32 v21, 0")
    a("v_mov_b32 v23, s52")
    a("s_mov_b64 exec, 1")
    a("buffer_store_dword v23, v21, s[32:35], s54 offen sc1")
    a("s_mov_b64 exec, -1")
    a("L_noep:")
    if stamps:
        a("s_waitcnt vmcnt(0)")
        stamp()
        a("s_waitcnt lgkmcnt(0)")
        a("s_cmp_lg_u32 s3, 0")
        a("s_cbranch_scc1 L_end")
        if dbg:
            a("s_load_dwordx2 s[54:55], s[0:1], 48")
            a("s_waitcnt lgkmcnt(0)")
            srd(a, 56, 54, 256)
            a("v_mov_b32 v5, 0")
            a("s_mov_b64 exec, 1")
            a("s_not_b32 s60, s70")
            a("v_mov_b32 v6, s60")
            a("buffer_atomic_umax v6, v5, s[56:59], 0 offen sc1")
            for i in range(nstamp[0]):
                r = 70 + 2 * i
                a(f"v_mov_b32 v{8+i}, s{r}")
                a(f"buffer_atomic_umax v{8+i}, v5, s[56:59], 0 offen offset:{4+4*i} sc1")
        else:
            a("s_lshl_b32 s54, s2, 8")
            a(f"s_add_u32 s54, s54, {WS_STAMP}")
            a("v_mov_b32 v5, 0")
            a("s_mov_b64 exec, 1")
            for i in range(nstamp[0]):
                r = 70 + 2 * i
                a(f"v_mov_b32 v6, s{r}")
                a(f"v_mov_b32 v7, s{r+1}")
                a(f"buffer_store_dwordx2 v[6:7], v5, s[32:35], s54 offen offset:{8*i}")
                a("s_nop 1")
    a("L_end:")
    a("s_endpgm")
    txt = HEADER_COMMENTS + f"; @launch grid=(256,1,1) block=(256,1,1) lds={LDS_TOTAL}\n" + a.text()
    txt += '.section .rodata,"a"\n' + kernel_desc(name, 512, 102, 256)
    open(out, "w").write(txt)
    return nstamp[0]

if __name__ == "__main__":
    n = gen("k1.s", stamps=False)
    n = gen("k1s.s", stamps=True)
    n = gen("k1d.s", stamps=True, dbg=True)
    print("stamps", n)
```

```python
import sys, math, struct
from asmgen import *

WS_EPOCH = 0x0
WS_HELLO = 0x1000
WS_FLAG1 = 0x4000
WS_FLAG2 = 0x20000
WS_O     = 0x100000
WS_PART  = 0x800000
WS_STAMP = 0x8000000

SLOT = [0, 57344, 28672]
HI = 57344
XB = 12288
WOCH = 20480
KVB = 86016
QB_LDS = 28672
LDS_TOTAL = 163840
PSZ = 30720


class VM:
    def __init__(self, a):
        self.a = a; self.ops = []; self.done = -1
    def issue(self, tag, n=1):
        self.ops += [tag] * n
    def wait(self, tag):
        idx = max(i for i, t in enumerate(self.ops) if t == tag)
        if idx <= self.done:
            return
        n = len(self.ops) - 1 - idx
        assert n <= 63, n
        self.a(f"s_waitcnt vmcnt({n})")
        self.done = idx
    def reset(self):
        self.ops = []; self.done = -1


def gen(out, stamps=False, cyc=False, local=True, throttle=12, touch="sc1", swave=0, kvpos=4,
        px="", pwq="", pkv="", pwo="", padfrom=None, fine=False, odist=4, tpos=None, wo7pos=None, prio=True, zsplit=(), vpos=None, at9=(4,), atq=(5, 6, 0), kvlast=8, tail=True):
    a = Asm()
    name = NAME + "_kernel"
    P = lambda s: (" " + s) if s else ""
    nstamp = [0]
    def stamp(on=True):
        if not stamps or not on:
            return
        r = 70 + 2 * nstamp[0]
        assert r + 1 <= 101
        nstamp[0] += 1
        a(f"{'s_memtime' if cyc else 's_memrealtime'} s[{r}:{r+1}]")
    lst = swave == 6
    cst = swave == 0
    def interleave(M, R):
        n = len(M); k = 0
        for i, m in enumerate(M):
            a(m)
            tgt = (len(R) * (i + 1) + n - 1) // n
            while k < min(tgt, len(R)):
                a(R[k]); k += 1
        while k < len(R):
            a(R[k]); k += 1
    def store_stamps(n):
        a("s_waitcnt vmcnt(0) lgkmcnt(0)")
        a(f"s_cmp_lg_u32 s3, {swave}")
        a("s_cbranch_scc1 L_end")
        a("s_lshl_b32 s54, s2, 8")
        a(f"s_add_u32 s54, s54, {WS_STAMP}")
        a("v_mov_b32 v5, 0")
        a("s_mov_b64 exec, 1")
        for i in range(n):
            r = 70 + 2 * i
            a(f"v_mov_b32 v6, s{r}")
            a(f"v_mov_b32 v7, s{r+1}")
            a(f"buffer_store_dwordx2 v[6:7], v5, s[32:35], s54 offen offset:{8*i}")
            a("s_nop 1")

    ACC = 24; KF = 72; VT32 = 120; VT16 = 152; QB = 168
    HV = 184
    KA = 185; VA = 186; TA_ = 187

    a('.amdgcn_target "amdgcn-amd-amdhsa--gfx950"')
    a(".text")
    kernel_begin(a, name)
    a("s_cmp_ge_u32 s2, 256")
    a("s_cbranch_scc1 L_end")
    stamp()
    a("s_load_dwordx16 s[36:51], s[0:1], 0")
    a("v_lshrrev_b32 v2, 6, v0")
    a("v_and_b32 v1, 63, v0")
    a("s_and_b32 s6, s2, 7")
    a("v_readfirstlane_b32 s3, v2")
    a("s_lshr_b32 s7, s2, 3")
    a("s_and_b32 s7, s7, 3")
    a("s_lshr_b32 s5, s2, 5")
    a("s_lshl_b32 s4, s6, 2")
    a("s_add_u32 s4, s4, s7")
    a("v_lshrrev_b32 v2, 4, v1")
    a("v_lshlrev_b32 v3, 4, v1")
    a("s_and_b32 s58, s3, 1")
    a("s_cmp_lt_u32 s3, 4")
    a("s_cbranch_scc1 L_compute")

    def att_setup():
        a("s_lshl_b32 s54, s5, 7")
        a("s_load_dword s52, s[50:51], s54")
        a("s_cmp_ge_u32 s3, 3")
        a("s_cselect_b32 s60, 1, 0")
        a("s_mul_i32 s54, s60, 3")
        a("s_sub_u32 s61, s3, s54")
        a("v_and_b32 v16, 15, v1")
        a("v_lshrrev_b32 v17, 1, v2")
        a("v_xor_b32 v17, v17, v16")
        a("v_lshlrev_b32 v17, 4, v17")
        a("v_lshl_add_u32 v17, v16, 8, v17")
        a("v_and_b32 v18, 1, v2")
        a("v_lshl_add_u32 v17, v18, 3, v17")
        a("s_mul_i32 s54, s60, 12288")
        a(f"s_add_u32 s54, s54, {KVB}")
        a(f"v_add_u32 v{KA}, s54, v17")
        a("v_bfe_u32 v16, v1, 2, 2")
        a("v_lshl_add_u32 v17, v2, 2, v16")
        a("v_and_b32 v16, 7, v17")
        a("v_lshlrev_b32 v17, 8, v17")
        a("v_lshl_add_u32 v17, v16, 5, v17")
        a("v_and_b32 v16, 3, v1")
        a("v_lshl_add_u32 v17, v16, 3, v17")
        a("s_add_u32 s54, s54, 24576")
        a(f"v_add_u32 v{VA}, s54, v17")
        a("s_lshl_b32 s54, s5, 3")
        a("s_add_u32 s54, s54, s6")
        a("s_lshl_b32 s55, s54, 7")
        a(f"s_add_u32 s68, s55, {WS_HELLO}")
        a("s_lshl_b32 s55, s54, 8")
        a(f"s_add_u32 s64, s55, {WS_FLAG1}")
        a("s_lshl_b32 s54, s5, 5")
        a("s_add_u32 s54, s54, s4")
        a("s_mul_i32 s54, s54, 24576")
        a(f"s_add_u32 s63, s54, {WS_O}")
        a("s_add_u32 s36, s7, s5")
        a("s_and_b32 s36, s36, 3")
        a("s_lshr_b32 s37, s5, 2")
        a("s_waitcnt lgkmcnt(0)")
        a("s_mul_i32 s52, s52, 0x41C64E6D")
        a("s_add_u32 s52, s52, 0x3039")
        if local:
            a("s_getreg_b32 s54, hwreg(HW_REG_XCC_ID, 0, 4)")
            a("s_lshl_b32 s54, s54, 8")
            a("s_or_b32 s54, s54, 0x5a")
            a("s_xor_b32 s67, s52, s54")
    def kvreads():
        L = []
        for x in range(8):
            t = TA_ + (x & 1)
            L.append(f"v_xor_b32 v{t}, {x*32}, v{KA}")
            for kt in range(3):
                r = KF + (kt * 4 + (x >> 1)) * 4 + (x & 1) * 2
                L.append(f"ds_read_b64 v[{r}:{r+1}], v{t} offset:{kt*4096}")
        for t8 in range(8):
            t = TA_ + (t8 & 1)
            L.append(f"v_xor_b32 v{t}, {t8*32}, v{VA}")
            for kt in range(3):
                r = (VT32 + 4 * t8 + 2 * kt) if kt < 2 else (VT16 + 2 * t8)
                L.append(f"ds_read_b64_tr_b16 v[{r}:{r+1}], v{t} offset:{kt*4096}")
        return L
    def hello_load():
        return [f"v_and_b32 v{TA_}, 3, v1", f"v_lshlrev_b32 v{TA_}, 2, v{TA_}",
                f"buffer_load_dword v{HV}, v{TA_}, s[32:35], s68 offen sc1"]
    if vpos is None: vpos = kvpos
    kvc = kvpos + 1
    if tpos is None: tpos = kvpos
    if wo7pos is None: wo7pos = kvpos
    ORDER = [7, 3, 4, 5, 6, 0, 1, 2]

    vm = VM(a)
    if prio: a("s_setprio 2")
    a("s_and_b32 s59, s3, 3")
    a("s_mul_i32 s53, s7, 3")
    a("s_add_u32 s53, s53, s5")
    a("s_add_u32 s53, s53, s6")
    for _ in range(2):
        a("s_cmp_ge_u32 s53, 10")
        a("s_cselect_b32 s54, 10, 0")
        a("s_sub_u32 s53, s53, s54")
    a("v_lshrrev_b32 v20, 3, v1")
    a("v_and_b32 v21, 7, v1")
    a("v_xor_b32 v21, v21, v2")
    a("s_mul_i32 s54, s5, 96")
    a("s_mul_i32 s55, s59, 24")
    a("s_add_u32 s54, s54, s55")
    a("v_add_u32 v20, s54, v20")
    a("v_mul_u32_u24 v20, 1280, v20")
    a("s_lshl_b32 s55, s58, 2")
    a("v_xor_b32 v22, s55, v21")
    a("v_xor_b32 v23, 4, v22")
    a("v_lshl_add_u32 v4, v22, 4, v20")
    a("v_lshl_add_u32 v5, v23, 4, v20")
    a(f"v_add_u32 v5, {10240-1024}, v5")
    a(f"v_add_u32 v6, {2*(10240-1024)}, v4")
    a("v_and_b32 v20, 15, v1")
    a("v_lshlrev_b32 v21, 1, v2")
    a("v_xor_b32 v20, v20, v21")
    a("s_lshl_b32 s54, s59, 4")
    a("v_add_u32 v21, s54, v2")
    a("v_lshlrev_b32 v21, 13, v21")
    a("s_lshl_b32 s54, s4, 8")
    a("v_add_u32 v21, s54, v21")
    a("v_lshl_add_u32 v7, v20, 4, v21")
    a(f"v_add_u32 v8, {32768-1024}, v7")
    a("v_xor_b32 v20, 8, v20")
    a("v_lshl_add_u32 v9, v20, 4, v21")
    a(f"v_add_u32 v9, {2*(32768-1024)}, v9")
    a(f"v_add_u32 v10, {32768-1024}, v9")
    a("s_mul_i32 s56, s59, 3072")
    a("s_lshl_b32 s57, s59, 12")
    a(f"s_add_u32 s57, s57, {XB}")
    a("s_waitcnt lgkmcnt(0)")
    srd(a, 8, 36, X_BYTES)
    srd(a, 20, 42, WQ_BYTES)

    def issue_chunk(c):
        sl = SLOT[c % 3]
        a("s_lshl_b32 s54, s53, 7")
        a(f"s_add_u32 m0, s56, {sl}")
        a("s_lshl_b32 s55, s53, 19")
        for i in range(3):
            a(f"buffer_load_dwordx4 v{4+i}, s[8:11], s54 offen offset:{i*1024}{P(px)} lds")
        a(f"s_add_u32 m0, s57, {sl}")
        a("s_add_u32 s53, s53, 1")
        for i in range(4):
            a(f"buffer_load_dwordx4 v{7+i}, s[20:23], s55 offen offset:{i*1024}{P(pwq)} lds")
        vm.issue(("c", c), 7)
        a("s_cmp_ge_u32 s53, 10")
        a("s_cselect_b32 s53, 0, s53")
    def issue_kv(which):
        sr = "s[12:15]" if which == 0 else "s[16:19]"
        for i in range(6):
            if i % 4 == 0:
                a(f"s_add_u32 m0, s65, {KVB + which*24576 + i*1024}")
                a(f"s_add_u32 s54, s66, {i*1024}")
            vo = f"v{11 + (i & 3)}" if which == 0 else f"v{[15, 19][i & 1]}"
            a(f"buffer_load_dwordx4 {vo}, {sr}, s54 offen offset:{(i%4)*1024}{P(pkv)} lds")
        vm.issue("kv", 6)
    issue_chunk(0)
    issue_chunk(1)
    srd(a, 12, 38, KV_BYTES)
    srd(a, 16, 40, KV_BYTES)
    srd(a, 32, 50, WS_BYTES)
    srd(a, 24, 44, WO_BYTES)
    a("s_lshr_b32 s55, s59, 1")
    a("s_lshl_b32 s54, s5, 1")
    a("s_add_u32 s54, s54, s55")
    a("s_lshl_b32 s54, s54, 5")
    a("s_add_u32 s54, s54, s4")
    a("s_mul_i32 s54, s54, 12288")
    a("s_mul_i32 s55, s58, 6144")
    a("s_add_u32 s66, s54, s55")
    a("s_mul_i32 s65, s59, 6144")
    a("v_lshlrev_b32 v20, 4, v2")
    a("v_xor_b32 v20, v3, v20")
    for i in range(4):
        a(f"s_lshl_b32 s54, s58, 1")
        a(f"s_add_u32 s54, s54, {i}")
        a("s_and_b32 s54, s54, 3")
        a("s_lshl_b32 s54, s54, 6")
        a(f"v_xor_b32 v{11+i}, s54, v20")
    a("v_lshlrev_b32 v20, 5, v2")
    a("v_xor_b32 v15, v3, v20")
    a("v_xor_b32 v19, 128, v15")
    att_setup()
    WOV = 24
    for i in range(5):
        a(f"v_add_u32 v20, {64*i}, v1")
        a("v_mul_u32_u24 v21, 52429, v20")
        a("v_lshrrev_b32 v21, 20, v21")
        a("v_mul_u32_u24 v23, 20, v21")
        a("v_sub_u32 v20, v20, v23")
        a("v_bfe_u32 v23, v21, 2, 1")
        a("v_lshlrev_b32 v23, 1, v23")
        a("v_xor_b32 v20, v23, v20")
        a("v_mul_u32_u24 v21, 1280, v21")
        a(f"v_lshl_add_u32 v{WOV+i}, v20, 4, v21")
        if 0 < i < 4:
            a(f"v_subrev_u32 v{WOV+i}, {1024*i}, v{WOV+i}")
    a("s_mul_i32 s40, s6, 655360")
    a("s_mul_i32 s54, s36, 320")
    a("s_add_u32 s40, s40, s54")
    a("s_mul_i32 s54, s59, 20480")
    a("s_add_u32 s38, s40, s54")
    a("s_mul_i32 s39, s59, 5120")
    a("s_mul_i32 s54, s58, 20480")
    a("s_add_u32 s40, s40, s54")
    a("s_mul_i32 s41, s58, 5120")

    def issue_wo(m, thr=None, four=False):
        k = ORDER.index(m)
        a(f"s_add_u32 s54, s7, {k>>1}")
        a("s_and_b32 s54, s54, 3")
        a("s_lshl_b32 s54, s54, 1")
        a(f"s_xor_b32 s55, s37, {k&1}")
        a("s_add_u32 s54, s54, s55")
        a("s_mul_i32 s54, s54, 81920")
        a(f"s_add_u32 s54, s54, {'s38' if four else 's40'}")
        lb = "s39" if four else "s41"
        for blk in range(1 if four else 2):
            a(f"s_add_u32 m0, {lb}, {m*WOCH + blk*10240}")
            if blk: a("s_add_u32 s54, s54, 40960")
            else: a("s_nop 0")
            for i in range(5):
                if thr is not None:
                    a(f"s_waitcnt vmcnt({thr-1})")
                if i == 4:
                    a(f"s_add_u32 m0, {lb}, {m*WOCH + blk*10240 + 4096}")
                    a("s_nop 0")
                    a(f"buffer_load_dwordx4 v{WOV+i}, s[24:27], s54 offen{P(pwo)} lds")
                else:
                    a(f"buffer_load_dwordx4 v{WOV+i}, s[24:27], s54 offen offset:{i*1024}{P(pwo)} lds")
        vm.issue(("wo", m), 5 if four else 10)
    def extras(c):
        if c == kvpos: issue_kv(0)
        if c == vpos: issue_kv(1)
        if c == wo7pos: issue_wo(7, four=True)
    extras(1)
    KVL = kvreads()
    sched = {c: [] for c in range(10)}
    groups = [(kvpos + 1, KVL[4*k:4*k+4]) for k in range(8)] + [(vpos + 1, KVL[32+4*k:32+4*k+4]) for k in range(8)]
    for start, grp in sorted(groups, key=lambda t: -t[0]):
        best = min(range(start, kvlast + 1), key=lambda c: (len(sched[c]), c))
        sched[best] += grp
    def kvpart(c):
        return sched[c]
    def ld_kv(c):
        part = kvpart(c)
        if not part: return
        l = a.label("L_nokv")
        a("s_cmp_ge_u32 s3, 6")
        a(f"s_cbranch_scc1 {l}")
        for r in part: a(r)
        a(f"{l}:")
    for c in range(8):
        vm.wait(("c", c))
        a("s_barrier")
        stamp(lst)
        issue_chunk(c + 2)
        extras(c + 2)
        ld_kv(c)
    vm.wait(("c", 8))
    a("s_cmp_ge_u32 s3, 6")
    a("s_cbranch_scc1 L_wo_loader")
    a("s_barrier")
    if local:
        for l in hello_load(): a(l.replace(f"v{TA_}", "v20"))
    for r in kvpart(8): a(r)
    a(f"s_waitcnt vmcnt({1 if local else 0}) lgkmcnt(0)")
    a("s_barrier")
    for r in kvpart(9): a(r)
    if prio: a("s_setprio 0")
    a("s_waitcnt lgkmcnt(0)")
    a("s_branch L_attn")
    a("L_wo_loader:")
    a("s_barrier")
    stamp(lst)
    issue_wo(3)
    vm.wait(("c", 9))
    a("s_barrier")
    stamp(lst)
    for m in at9: issue_wo(m)
    a("s_barrier")
    for m in atq: issue_wo(m, throttle)
    vm.wait(("wo", 3))
    stamp(lst)
    a("s_barrier")
    a("s_barrier")
    for m in ORDER[2:]:
        if m not in at9 and m not in atq:
            issue_wo(m, throttle)
    a("s_waitcnt vmcnt(0)")
    stamp(lst)
    a("s_barrier")
    if stamps and lst:
        store_stamps(nstamp[0])
    a("s_endpgm")
    nl = nstamp[0]
    if stamps:
        nstamp[0] = 1

    a("L_compute:")
    vm = VM(a)
    a("s_lshr_b32 s59, s3, 1")
    a("v_and_b32 v20, 15, v1")
    a("v_lshrrev_b32 v21, 1, v20")
    a("v_xor_b32 v21, v21, v2")
    a("s_mul_i32 s54, s59, 48")
    a("v_add_u32 v20, s54, v20")
    a("v_lshlrev_b32 v20, 7, v20")
    a("v_lshl_add_u32 v4, v21, 4, v20")
    a("v_xor_b32 v5, 64, v4")
    a(f"v_add_u32 v6, {HI}, v4")
    a(f"v_add_u32 v7, {HI}, v5")
    a("v_bfe_u32 v20, v1, 2, 2")
    a("v_and_b32 v21, 1, v2")
    a("v_lshl_or_b32 v21, v21, 2, v20")
    a("s_lshl_b32 s54, s58, 2")
    a("v_xor_b32 v21, s54, v21")
    a("v_lshl_add_u32 v23, v2, 3, v20")
    a("v_lshlrev_b32 v23, 8, v23")
    a("v_and_b32 v22, 3, v1")
    a("v_lshl_add_u32 v23, v22, 3, v23")
    a(f"v_add_u32 v23, {XB}, v23")
    for T in range(4):
        a(f"v_xor_b32 v22, {T}, v21")
        a(f"v_lshl_add_u32 v{8+T}, v22, 5, v23")
        a(f"v_add_u32 v{12+T}, {HI}, v{8+T}")
    a("s_waitcnt lgkmcnt(0)")
    srd(a, 32, 50, WS_BYTES)
    att_setup()
    a("s_lshl_b32 s54, s2, 2")
    a("s_add_u32 s54, s54, s3")
    a("s_lshl_b32 s54, s54, 7")
    a(f"s_add_u32 s69, s54, {WS_FLAG2}")
    a("v_mov_b32 v21, 0")
    a("s_lshl_b32 s54, s59, 7")
    a("s_add_u32 s62, s64, s54")
    a("buffer_load_dword v22, v21, s[32:35], s62 offen sc1")
    a("buffer_load_dword v23, v21, s[32:35], s69 offen sc1")
    if local:
        a("s_cmp_lg_u32 s3, 0")
        a("s_cbranch_scc1 L_nohello")
        a("s_lshl_b32 s54, s7, 2")
        a("v_mov_b32 v20, s54")
        a("v_mov_b32 v21, s67")
        a("s_mov_b64 exec, 1")
        a("buffer_store_dword v21, v20, s[32:35], s68 offen sc1")
        a("s_mov_b64 exec, -1")
        a("L_nohello:")

    def fa(s, T): return s * 28 + T * 4
    def fb(s, qt): return s * 28 + 16 + qt * 4
    def reads(c, s):
        hi = (c % 3) == 1
        off0 = 0 if hi else SLOT[c % 3]
        L = []
        for qt in range(3):
            ad = (6 if hi else 4) + s
            r = fb(s, qt)
            L.append(f"ds_read_b128 a[{r}:{r+3}], v{ad} offset:{off0 + qt*2048}")
        for T in range(4):
            ad = (12 if hi else 8) + T
            for hf in range(2):
                r = fa(s, T) + 2 * hf
                L.append(f"ds_read_b64_tr_b16 a[{r}:{r+1}], v{ad} offset:{off0 + (32*s + 4*hf)*256}")
        return L
    def mfmas(c, s):
        L = []
        for T in range(4):
            for qt in range(3):
                d = ACC + (T * 3 + qt) * 4
                A = fa(s, T); B = fb(s, qt)
                C = "0" if (c == 0 and s == 0) else f"v[{d}:{d+3}]"
                L.append(f"v_mfma_f32_16x16x32_bf16 v[{d}:{d+3}], a[{A}:{A+3}], a[{B}:{B+3}], {C}")
        return L
    def dense(M, R, X=()):
        R = list(R); X = list(X)
        a(R.pop(0))
        for i, m in enumerate(M):
            a(m)
            for _ in range(2):
                if R: a(R.pop(0))
                elif X: a(X.pop(0))
        for x in R + X: a(x)
    for c in range(10):
        a("s_barrier")
        part = kvpart(c)
        hp = (len(part) // 8) * 4
        X0 = part[:hp]; X1 = part[hp:]
        if c == 8 and local:
            X0 = [l.replace(f"v{TA_}", "v20") for l in hello_load()] + X0
        if c == 0:
            for r in reads(0, 0): a(r)
        else:
            dense(mfmas(c - 1, 1), reads(c, 0), X0)
        a("s_waitcnt lgkmcnt(0)")
        dense(mfmas(c, 0), reads(c, 1), X1)
        a("s_waitcnt lgkmcnt(0)")
    stamp(cst)
    M = mfmas(9, 1)
    a("s_mul_i32 s54, s59, 12288")
    a("s_lshl_b32 s55, s58, 11")
    a("s_add_u32 s54, s54, s55")
    a(f"s_add_u32 s54, s54, {QB_LDS}")
    a("v_add_u32 v16, s54, v3")
    for m in M: a(m)
    a("s_nop 1")
    def qcvt(s, qt):
        A0 = ACC + ((2 * s) * 3 + qt) * 4
        B0 = ACC + ((2 * s + 1) * 3 + qt) * 4
        a(f"v_cvt_pk_bf16_f32 v{A0}, v{A0}, v{A0+1}")
        a(f"v_cvt_pk_bf16_f32 v{A0+1}, v{A0+2}, v{A0+3}")
        a(f"v_cvt_pk_bf16_f32 v{A0+2}, v{B0}, v{B0+1}")
        a(f"v_cvt_pk_bf16_f32 v{A0+3}, v{B0+2}, v{B0+3}")
        a(f"ds_write_b128 v16, v[{A0}:{A0+3}] offset:{qt*4096 + s*1024}")
    for s in range(2):
        for qt in range(3):
            qcvt(s, qt)
    a("s_waitcnt lgkmcnt(0)")

    a("L_attn:")
    a("s_lshl_b32 s54, s3, 12")
    a(f"s_add_u32 s54, s54, {QB_LDS}")
    a("v_add_u32 v16, s54, v3")
    a("s_barrier")
    stamp(cst and fine)
    for s in range(4):
        a(f"ds_read_b128 v[{QB+4*s}:{QB+4*s+3}], v16 offset:{s*1024}")
    SA = 24; PF = 36; LS = 44; ONE = 48; MX = 52; TM = 53; OA = 72; OPK = 104
    for r in range(4):
        a(f"v_mov_b32 v{ONE+r}, 0x3f803f80")
    cexp = math.log2(math.e) / math.sqrt(128.0)
    cbits = struct.unpack("<I", struct.pack("<f", cexp))[0]
    a(f"s_mov_b32 s66, {cbits:#x}")
    a("s_lshl_b32 s54, s3, 12")
    a("s_add_u32 s65, s63, s54")
    a("s_waitcnt lgkmcnt(0)")
    stamp(cst)
    for s in range(4):
        for kt in range(3):
            d = SA + 4 * kt
            A = KF + (kt * 4 + s) * 4
            C = "0" if s == 0 else f"v[{d}:{d+3}]"
            a(f"v_mfma_f32_16x16x32_bf16 v[{d}:{d+3}], v[{A}:{A+3}], v[{QB+4*s}:{QB+4*s+3}], {C}")
    a("s_lshl_b32 s54, s60, 7")
    a("s_add_u32 s64, s64, s54")
    a("s_mul_i32 s54, s7, 3")
    a("s_add_u32 s54, s54, s61")
    a("s_lshl_b32 s54, s54, 2")
    a("v_mov_b32 v17, s54")
    a("v_mov_b32 v18, s52")
    if local:
        a("s_waitcnt vmcnt(0)")
        a(f"v_cmp_ne_u32 vcc, s67, v{HV}")
        a("s_mov_b64 s[56:57], vcc")
    else:
        a("s_nop 2")
    a(f"v_max3_f32 v{MX}, v{SA}, v{SA+1}, v{SA+2}")
    a(f"v_max3_f32 v{TM}, v{SA+3}, v{SA+4}, v{SA+5}")
    a(f"v_max3_f32 v{MX}, v{MX}, v{SA+6}, v{SA+7}")
    a(f"v_max3_f32 v{TM}, v{TM}, v{SA+8}, v{SA+9}")
    a(f"v_max3_f32 v{MX}, v{MX}, v{SA+10}, v{SA+11}")
    a(f"v_max_f32 v{MX}, v{MX}, v{TM}")
    for sw in ("v_permlane32_swap_b32", "v_permlane16_swap_b32"):
        a(f"v_mov_b32 v{TM}, v{MX}")
        a("s_nop 1")
        a(f"{sw} v{MX}, v{TM}")
        a("s_nop 1")
        a(f"v_max_f32 v{MX}, v{MX}, v{TM}")
    a(f"v_mul_f32 v{MX}, s66, v{MX}")
    for k in range(12):
        a(f"v_fma_f32 v{SA+k}, v{SA+k}, s66, -v{MX}")
    for k in range(12):
        a(f"v_exp_f32 v{SA+k}, v{SA+k}")
    a("s_nop 0")
    for k in range(6):
        a(f"v_cvt_pk_bf16_f32 v{PF+k}, v{SA+2*k}, v{SA+2*k+1}")
    a("s_nop 1")
    stamp(cst and fine)
    a(f"v_mfma_f32_16x16x32_bf16 v[{LS}:{LS+3}], v[{ONE}:{ONE+3}], v[{PF}:{PF+3}], 0")
    for t in range(8):
        d = OA + 4 * t
        a(f"v_mfma_f32_16x16x32_bf16 v[{d}:{d+3}], v[{VT32+4*t}:{VT32+4*t+3}], v[{PF}:{PF+3}], 0")
    a(f"v_mfma_f32_16x16x16_bf16 v[{LS}:{LS+3}], v[{ONE}:{ONE+1}], v[{PF+4}:{PF+5}], v[{LS}:{LS+3}]")
    for t in range(8):
        d = OA + 4 * t
        a(f"v_mfma_f32_16x16x16_bf16 v[{d}:{d+3}], v[{VT16+2*t}:{VT16+2*t+1}], v[{PF+4}:{PF+5}], v[{d}:{d+3}]")
    a(f"v_rcp_f32 v{MX}, v{LS}")
    a("s_nop 0")
    a(f"v_mov_b32 v{TM}, v{MX}")
    def fin(u):
        for tt in range(2):
            d = OA + 4 * (2 * u + tt)
            a(f"v_pk_mul_f32 v[{d}:{d+1}], v[{d}:{d+1}], v[{MX}:{TM}]")
            a(f"v_pk_mul_f32 v[{d+2}:{d+3}], v[{d+2}:{d+3}], v[{MX}:{TM}]")
            a(f"v_cvt_pk_bf16_f32 v{OPK+4*u+2*tt}, v{d}, v{d+1}")
            a(f"v_cvt_pk_bf16_f32 v{OPK+4*u+2*tt+1}, v{d+2}, v{d+3}")
    for u in range(4):
        fin(u)
        a(f"ds_write_b128 v16, v[{OPK+4*u}:{OPK+4*u+3}] offset:{u*1024}")
        a(f"buffer_store_dwordx4 v[{OPK+4*u}:{OPK+4*u+3}], v3, s[32:35], s65 offen offset:{u*1024} sc1")
    def flag1_store():
        a("s_waitcnt vmcnt(0)")
        a("s_mov_b64 exec, 1")
        if local:
            l1 = a.label("L_fg"); l2 = a.label("L_fd")
            a("s_cmp_lg_u64 s[56:57], 0")
            a(f"s_cbranch_scc1 {l1}")
            a("buffer_store_dword v18, v17, s[32:35], s64 offen")
            a(f"s_branch {l2}")
            a(f"{l1}:")
        a("buffer_store_dword v18, v17, s[32:35], s64 offen sc1")
        if local:
            a(f"{l2}:")
        a("s_mov_b64 exec, -1")
    stamp(cst)
    a("s_cmp_lt_u32 s3, 4")
    a("s_cbranch_scc1 L_p2")
    a("s_waitcnt lgkmcnt(0)")
    a("s_barrier")
    a("s_barrier")
    flag1_store()
    a("s_endpgm")
    a("L_p2:")

    a("s_lshl_b32 s54, s5, 5")
    a("s_lshl_b32 s55, s6, 2")
    a("s_add_u32 s54, s54, s55")
    a("s_mul_i32 s54, s54, 24576")
    a("s_mul_i32 s55, s59, 12288")
    a("s_add_u32 s54, s54, s55")
    a(f"s_add_u32 s54, s54, {WS_O}")
    a("v_add_u32 v4, s54, v3")
    a("v_add_u32 v5, 4096, v4")
    a("v_add_u32 v6, 8192, v4")
    a("v_bfe_u32 v19, v1, 2, 2")
    a("v_lshl_add_u32 v19, v2, 2, v19")
    a("v_mul_u32_u24 v19, 320, v19")
    a("v_and_b32 v20, 3, v1")
    a("v_lshl_add_u32 v19, v20, 3, v19")
    a("s_mul_i32 s54, s58, 160")
    a("v_add_u32 v19, s54, v19")
    a("v_and_b32 v20, 1, v2")
    a("v_lshlrev_b32 v20, 5, v20")
    a("v_add_u32 v21, v19, v20")
    a("v_sub_u32 v20, v19, v20")
    a("s_cmp_eq_u32 s58, 0")
    a("s_cselect_b64 vcc, -1, 0")
    a("v_cndmask_b32 v8, v20, v21, vcc")
    a("v_cndmask_b32 v9, v21, v20, vcc")
    a(f"v_add_u32 v10, {3*WOCH}, v8")
    a(f"v_add_u32 v11, {3*WOCH}, v9")
    a(f"v_add_u32 v12, {6*WOCH}, v8")
    a(f"v_add_u32 v13, {6*WOCH}, v9")
    a("s_mul_i32 s54, s59, 12288")
    a(f"s_add_u32 s54, s54, {QB_LDS}")
    a("s_lshl_b32 s55, s37, 11")
    a("s_add_u32 s54, s54, s55")
    a("v_add_u32 v14, s54, v3")
    a("v_xor_b32 v15, 2048, v14")
    a("v_min_u32 v21, 11, v1")
    a("v_lshlrev_b32 v21, 2, v21")
    srd(a, 28, 46, OUT_BYTES)
    NST = 5
    assert odist < NST
    ACC2 = 24
    WF = 128
    PK = 88
    def wreads(ks):
        m, u = ORDER[ks >> 1], ks & 1
        b = ks % 2
        L = []
        for nt in range(5):
            ad = 8 + 2 * (m // 3) + (nt & 1)
            for hf in range(2):
                r = WF + b * 20 + nt * 4 + 2 * hf
                off = (m % 3) * WOCH + (32 * u + 16 * hf) * 320 + 32 * nt
                L.append(f"ds_read_b64_tr_b16 v[{r}:{r+1}], v{ad} offset:{off}")
        return L
    def mf2(ks):
        b = ks % 2
        L = []
        for nt in range(5):
            for qt in range(3):
                d = ACC2 + (nt * 3 + qt) * 4
                A = WF + b * 20 + nt * 4
                B = ((ks % NST) * 3 + qt) * 4
                C = "0" if ks == 0 else f"v[{d}:{d+3}]"
                L.append(f"v_mfma_f32_16x16x32_bf16 v[{d}:{d+3}], v[{A}:{A+3}], a[{B}:{B+3}], {C}")
        return L
    def oloads(ks):
        k, u = ks >> 1, ks & 1
        L = []
        if u == 0:
            L.append(f"s_add_u32 s55, s7, {k>>1}\ns_and_b32 s55, s55, 3\ns_mul_i32 s55, s55, 24576\n"
                     f"s_xor_b32 s54, s37, {k&1}\ns_lshl_b32 s54, s54, 11\ns_add_u32 s54, s54, s55")
        for qt in range(3):
            r = ((ks % NST) * 3 + qt) * 4
            L.append(f"buffer_load_dwordx4 a[{r}:{r+3}], v{4+qt}, s[32:35], s54 offen offset:{u*1024} sc1")
        return L
    def emit(M, W, O):
        slots = [[] for _ in M]
        for k, wr in enumerate(W): slots[min(k, len(M) - 1)].append(wr)
        for k, o in enumerate(O): slots[(k * len(M)) // max(len(O), 1)].append(o)
        for m, sl in zip(M, slots):
            a(m)
            for x in sl: a(x)
    for r in wreads(0): a(r)
    a("s_waitcnt lgkmcnt(0)")
    a("s_barrier")
    for ks in range(4):
        for qt in range(3):
            r = (ks * 3 + qt) * 4
            a(f"ds_read_b128 a[{r}:{r+3}], v{14 + (ks >> 1)} offset:{qt*4096 + (ks&1)*1024}")
    a("s_waitcnt lgkmcnt(0)")
    a("s_barrier")
    stamp(cst)
    emit(mf2(0), wreads(1), [])
    flag1_store()
    a("buffer_load_dword v23, v21, s[32:35], s62 offen sc1")
    a("s_waitcnt lgkmcnt(0)")
    emit(mf2(1), wreads(2), [])
    a("s_mov_b32 s53, 0")
    a("s_branch L_chk1")
    a("L_poll1:")
    a("buffer_load_dword v23, v21, s[32:35], s62 offen sc1")
    a("s_add_u32 s53, s53, 1")
    a("s_cmp_ge_u32 s53, 0x100000")
    a("s_cbranch_scc1 L_got1")
    a("L_chk1:")
    a("s_waitcnt vmcnt(0)")
    a("v_cmp_ne_u32 vcc, s52, v23")
    a("s_cbranch_vccnz L_poll1")
    a("L_got1:")
    a("s_waitcnt vmcnt(0)")
    vm.reset()
    stamp(cst)
    for l in oloads(4): a(l)
    vm.issue(("O", 4), 3)
    issued = 5
    a("s_lshl_b32 s65, s5, 2")
    a("s_add_u32 s65, s65, s36")
    a(f"s_mul_i32 s65, s65, {8*PSZ}")
    a("s_mul_i32 s56, s3, 7680")
    a("s_add_u32 s65, s65, s56")
    a(f"s_add_u32 s66, s65, {WS_PART}")
    a(f"s_mul_i32 s56, s6, {PSZ}")
    a("s_add_u32 s65, s66, s56")
    a("s_add_u32 s57, s65, 4096")
    a("v_lshlrev_b32 v22, 3, v1")
    KEND = 12 if tail else 16
    def treads(nt):
        L = []
        b = nt % 2
        for ks in range(12, 16):
            m, u = ORDER[ks >> 1], ks & 1
            ad = 8 + 2 * (m // 3) + (nt & 1)
            for hf in range(2):
                r = WF + b * 20 + (ks - 12) * 4 + 2 * hf
                off = (m % 3) * WOCH + (32 * u + 16 * hf) * 320 + 32 * nt
                L.append(f"ds_read_b64_tr_b16 v[{r}:{r+1}], v{ad} offset:{off}")
        return L
    for ks in range(2, KEND):
        a("s_waitcnt lgkmcnt(0)")
        if ks >= 4:
            vm.wait(("O", ks))
        if ks == 3:
            a("s_barrier")
            stamp(cst)
        if ks + 1 < KEND: W = wreads(ks + 1)
        elif tail: W = treads(0)
        else: W = []
        O = []
        nnew = 0
        while issued < 16 and issued <= ks + odist and nnew < 2:
            O += oloads(issued); vm.issue(("O", issued), 3); issued += 1; nnew += 1
        emit(mf2(ks), W, O)
    assert issued == 16
    def pcvt(f):
        d = ACC2 + f * 4; o = PK + 2 * f
        L = [f"v_cvt_pk_bf16_f32 v{o}, v{d}, v{d+1}", f"v_cvt_pk_bf16_f32 v{o+1}, v{d+2}, v{d+3}"]
        if f % 2 == 1:
            u = f // 2
            L.append(f"buffer_store_dwordx4 v[{o-2}:{o+1}], v3, s[32:35], {'s65' if u < 4 else 's57'} offen offset:{(u%4)*1024} sc1")
        if f == 14:
            L.append(f"buffer_store_dwordx2 v[{o}:{o+1}], v22, s[32:35], s57 offen offset:3072 sc1")
        return L
    if tail:
        for nt in range(5):
            a("s_waitcnt lgkmcnt(0)")
            M = []
            for ks in range(12, 16):
                for qt in range(3):
                    d = ACC2 + (nt * 3 + qt) * 4
                    A = WF + (nt % 2) * 20 + (ks - 12) * 4
                    B = ((ks % NST) * 3 + qt) * 4
                    M.append(f"v_mfma_f32_16x16x32_bf16 v[{d}:{d+3}], v[{A}:{A+3}], a[{B}:{B+3}], v[{d}:{d+3}]")
            W = treads(nt + 1) if nt < 4 else []
            X = []
            if nt > 0:
                for qt in range(3): X += pcvt((nt - 1) * 3 + qt)
            slots = [[] for _ in M]
            for k, wr in enumerate(W): slots[k // 2].append(wr)
            st = 4 if W else 7
            for k, x in enumerate(X): slots[min(st + k, 11) if len(X) + st <= 12 else min(st + (k * (12 - st)) // len(X), 11)].append(x)
            for k, (m, sl) in enumerate(zip(M, slots)):
                if nt == 0 and k % 3 == 0:
                    vm.wait(("O", 12 + k // 3))
                a(m)
                for x in sl: a(x)
        stamp(cst)
        a("s_nop 7")
        for qt in range(3):
            for x in pcvt(12 + qt): a(x)
    else:
        stamp(cst)
        a("s_nop 7")
        for f in range(15):
            for x in pcvt(f): a(x)
    a("s_andn2_b32 s55, s2, 7")
    a("s_lshl_b32 s55, s55, 2")
    a("s_add_u32 s55, s55, s3")
    a("s_lshl_b32 s55, s55, 7")
    a("s_lshl_b32 s54, s6, 2")
    a("s_add_u32 s55, s55, s54")
    a(f"s_add_u32 s64, s55, {WS_FLAG2}")
    a("v_lshlrev_b32 v20, 9, v1")
    a("v_mov_b32 v21, s52")
    a("v_lshrrev_b32 v7, 3, v1")
    a("v_and_b32 v8, 7, v1")
    a("v_lshlrev_b32 v4, 10, v7")
    a("v_lshl_add_u32 v4, v8, 4, v4")
    a("s_lshl_b32 s54, s6, 7")
    a("s_lshl_b32 s55, s6, 6")
    a("v_mov_b32 v5, s54")
    a("v_mov_b32 v6, s55")
    a("v_cmp_gt_u32 vcc, 56, v1")
    a("v_lshlrev_b32 v9, 1, v7")
    a("v_add_u32 v10, 1, v9")
    a("v_cndmask_b32 v5, v6, v5, vcc")
    a("v_add_u32 v4, v4, v5")
    a("v_cndmask_b32 v10, v9, v10, vcc")
    a("v_lshlrev_b32 v11, 1, v8")
    a("v_add_u32 v12, 1, v11")
    a("v_cndmask_b32 v11, v11, v8, vcc")
    a("v_cndmask_b32 v12, v12, v8, vcc")
    a("s_mul_i32 s54, s5, 96")
    a("s_mul_i32 s55, s59, 48")
    a("s_add_u32 s54, s54, s55")
    a("s_and_b32 s55, s6, 1")
    a("s_lshl_b32 s55, s55, 3")
    a("s_add_u32 s54, s54, s55")
    a("s_mul_i32 s54, s54, 1280")
    a("s_mul_i32 s55, s36, 320")
    a("s_add_u32 s54, s54, s55")
    a("s_mul_i32 s55, s58, 160")
    a("s_add_u32 s54, s54, s55")
    a("s_lshr_b32 s55, s6, 1")
    a("s_lshl_b32 s55, s55, 3")
    a("s_add_u32 s60, s54, s55")
    for (f, r, d) in ((9, 11, 5), (10, 12, 6)):
        a(f"v_mul_u32_u24 v13, 43, v{f}")
        a("v_lshrrev_b32 v13, 7, v13")
        a("v_mul_u32_u24 v14, 3, v13")
        a(f"v_sub_u32 v14, v{f}, v14")
        a(f"v_lshl_add_u32 v14, v14, 4, v{r}")
        a("v_mul_u32_u24 v14, 1280, v14")
        a(f"v_lshl_add_u32 v{d}, v13, 5, v14")
    a("v_and_b32 v22, 7, v1")
    a("v_lshlrev_b32 v22, 2, v22")
    a("s_waitcnt vmcnt(0)")
    a("s_mov_b64 exec, 0xff")
    a("buffer_store_dword v21, v20, s[32:35], s64 offen sc1")
    stamp(cst)
    a("s_mov_b32 exec_lo, -1")
    a("s_mov_b32 exec_hi, 0x0fffffff")
    a("s_mov_b32 s61, 0")
    a("s_mov_b32 s53, 0")
    a("L_poll2:")
    a("buffer_load_dword v23, v22, s[32:35], s69 offen sc1")
    a("s_add_u32 s53, s53, 1")
    a("s_cmp_ge_u32 s53, 0x100000")
    a("s_cbranch_scc1 L_got2")
    a("s_waitcnt vmcnt(0)")
    a("v_cmp_eq_u32 vcc, s52, v23")
    a("s_and_b32 s54, vcc_lo, 0xff")
    a("s_andn2_b32 s54, s54, s61")
    a("s_cbranch_scc0 L_poll2")
    a("s_or_b32 s61, s61, s54")
    for src in range(8):
        l = a.label("L_ns")
        a(f"s_bitcmp1_b32 s54, {src}")
        a(f"s_cbranch_scc0 {l}")
        a(f"s_add_u32 s56, s66, {src*PSZ}")
        r = 24 + 4 * src
        a(f"buffer_load_dwordx4 v[{r}:{r+3}], v4, s[32:35], s56 offen sc1")
        a(f"{l}:")
    a("s_cmp_lg_u32 s61, 0xff")
    a("s_cbranch_scc1 L_poll2")
    a("L_got2:")
    stamp(cst)
    a("s_mov_b32 s56, 0xffff0000")
    a("s_waitcnt vmcnt(0)")
    for src in range(8):
        r = 24 + 4 * src
        for k in range(4):
            b = 64 if src == 0 else 72
            a(f"v_lshlrev_b32 v{b+2*k}, 16, v{r+k}")
            a(f"v_and_b32 v{b+1+2*k}, s56, v{r+k}")
        if src:
            for k in range(4):
                a(f"v_pk_add_f32 v[{64+2*k}:{65+2*k}], v[{64+2*k}:{65+2*k}], v[{72+2*k}:{73+2*k}]")
    for k in range(4):
        a(f"v_cvt_pk_bf16_f32 v{16+k}, v{64+2*k}, v{65+2*k}")
    a("buffer_store_dwordx2 v[16:17], v5, s[28:31], s60 offen")
    a("buffer_store_dwordx2 v[18:19], v6, s[28:31], s60 offen")
    a("s_mov_b64 exec, -1")
    a("s_and_b32 s54, s2, 31")
    a("s_or_b32 s54, s54, s3")
    a("s_cmp_lg_u32 s54, 0")
    a("s_cbranch_scc1 L_noep")
    a("s_lshl_b32 s54, s5, 7")
    a("v_mov_b32 v20, 0")
    a("s_mov_b64 exec, 1")
    a("buffer_store_dword v21, v20, s[32:35], s54 offen sc1")
    a("s_mov_b64 exec, -1")
    a("L_noep:")
    if padfrom is not None:
        r = 70 + 2 * padfrom
        a("s_waitcnt vmcnt(0)")
        stamp()
        a("L_pad:")
        a("s_memrealtime s[54:55]")
        a("s_waitcnt lgkmcnt(0)")
        a(f"s_sub_u32 s54, s54, s{r}")
        a("s_cmp_lt_u32 s54, 3000")
        a("s_cbranch_scc1 L_pad")
    elif stamps and cst:
        a("s_waitcnt vmcnt(0)")
        stamp()
        store_stamps(nstamp[0])
    a("L_end:")
    a("s_endpgm")
    txt = HEADER_COMMENTS + f"; @launch grid=(256,1,1) block=(512,1,1) lds={LDS_TOTAL}\n" + a.text()
    txt += '.section .rodata,"a"\n' + kernel_desc(name, 256, 102, 192)
    open(out, "w").write(txt)
    return nl if lst else nstamp[0]

if __name__ == "__main__":
    D = dict(kvpos=3, vpos=5, wo7pos=7)
    gen("k7.s", **D)
    F = []
    def v(name, **kw):
        n = gen(name, stamps=True, **{**D, **kw}); F.append(name); return n
    n = v("k7a.s")
    v("k7b.s", tail=False)
    v("k7c.s", at9=(4, 5), atq=(6, 0))
    v("k7d.s", throttle=None)
    v("k7e.s", local=False)
    nl = gen("k7l.s", stamps=True, swave=6, **D)
    nf = gen("k7f.s", stamps=True, cyc=True, fine=True, **D)
    print(" ".join(F))
    print(n, nl, nf, file=sys.stderr)
```

```python
import sys, math, struct, re
from asmgen import *

WS_EPOCH = 0x0
WS_HELLO = 0x1000
WS_FLAG1 = 0x4000
WS_FLAG2 = 0x20000
WS_O     = 0x100000
WS_PART  = 0x800000
WS_STAMP = 0x8000000

SLOT = [0, 57344, 28672]
HI = 57344
XB = 12288
WOCH = 20480
KVB = 86016
QB_LDS = 28672
LDS_TOTAL = 163840
PSZ = 32768
ORDER = [7, 3, 4, 5, 6, 0, 1, 2]


class VM:
    def __init__(self, a):
        self.a = a; self.ops = []; self.done = -1
    def issue(self, tag, n=1):
        self.ops += [tag] * n
    def wait(self, tag):
        idx = max(i for i, t in enumerate(self.ops) if t == tag)
        if idx <= self.done:
            return
        n = len(self.ops) - 1 - idx
        assert n <= 63, n
        self.a(f"s_waitcnt vmcnt({n})")
        self.done = idx
    def reset(self):
        self.ops = []; self.done = -1


def regs_of(tok):
    m = re.fullmatch(r"([va])\[(\d+):(\d+)\]", tok)
    if m:
        return {(m.group(1), r) for r in range(int(m.group(2)), int(m.group(3)) + 1)}
    m = re.fullmatch(r"([va])(\d+)", tok)
    if m:
        return {(m.group(1), int(m.group(2)))}
    return set()


class Emit:
    def __init__(self, a):
        self.a = a
        self.q = []
    def __call__(self, s):
        for ins in s.split("\n"):
            ins = ins.strip()
            if not ins: continue
            op = ins.split()[0]
            if op.startswith("v_mfma"):
                toks = [t.strip() for t in ins[len(op):].split(",")]
                need = regs_of(toks[1]) | regs_of(toks[2])
                idx = -1
                for i, d in enumerate(self.q):
                    if d & need: idx = i
                if idx >= 0:
                    n = min(len(self.q) - 1 - idx, 14)
                    self.a(f"s_waitcnt lgkmcnt({n})")
                    self.q = self.q[len(self.q) - n:] if n else []
                self.a(ins)
            elif op.startswith("ds_read"):
                toks = [t.strip() for t in ins[len(op):].split(",")]
                self.q.append(regs_of(toks[0]))
                self.a(ins)
            elif op.startswith("ds_"):
                self.q.append(set())
                self.a(ins)
            else:
                self.a(ins)
    def drain(self):
        self.a("s_waitcnt lgkmcnt(0)")
        self.q = []
    def wait_first(self, n_keep):
        if len(self.q) > n_keep:
            self.a(f"s_waitcnt lgkmcnt({min(n_keep, 15)})")
            self.q = self.q[len(self.q) - n_keep:] if n_keep else []


def gen(out, stamps=False, cyc=False, local=True, throttle=12, swave=0, kvpos=3, vpos=5, wo7pos=7,
        padfrom=None, fine=False, look=10, at9=(4,), atq=(5, 6, 0), kvlast=8, xtouch=False, lprio=2, lprio2=0, aprio=1, odist=4, bant=5, oldskew=True, outfl=''):
    a = Asm()
    name = NAME + "_kernel"
    nstamp = [0]
    def stamp(on=True):
        if not stamps or not on:
            return
        r = 70 + 2 * nstamp[0]
        assert r + 1 <= 101
        nstamp[0] += 1
        a(f"{'s_memtime' if cyc else 's_memrealtime'} s[{r}:{r+1}]")
    lst = swave == 6
    cst = swave == 0
    def store_stamps(n):
        a("s_waitcnt vmcnt(0) lgkmcnt(0)")
        a(f"s_cmp_lg_u32 s3, {swave}")
        a("s_cbranch_scc1 L_end")
        a("s_lshl_b32 s54, s2, 8")
        a(f"s_add_u32 s54, s54, {WS_STAMP}")
        a("v_mov_b32 v5, 0")
        a("s_mov_b64 exec, 1")
        for i in range(n):
            r = 70 + 2 * i
            a(f"v_mov_b32 v6, s{r}")
            a(f"v_mov_b32 v7, s{r+1}")
            a(f"buffer_store_dwordx2 v[6:7], v5, s[32:35], s54 offen offset:{8*i}")
            a("s_nop 1")

    ACC = 24; KF = 72; VT32 = 120; VT16 = 152
    QB = 56
    PA = 168
    HV = 184; KA = 185; VA = 186; TA_ = 187

    a('.amdgcn_target "amdgcn-amd-amdhsa--gfx950"')
    a(".text")
    kernel_begin(a, name)
    a("s_cmp_ge_u32 s2, 256")
    a("s_cbranch_scc1 L_end")
    stamp()
    a("s_load_dwordx16 s[36:51], s[0:1], 0")
    a("v_lshrrev_b32 v2, 6, v0")
    a("v_and_b32 v1, 63, v0")
    a("s_and_b32 s6, s2, 7")
    a("v_readfirstlane_b32 s3, v2")
    a("s_lshr_b32 s7, s2, 3")
    a("s_and_b32 s7, s7, 3")
    a("s_lshr_b32 s5, s2, 5")
    a("s_lshl_b32 s4, s6, 2")
    a("s_add_u32 s4, s4, s7")
    a("v_lshrrev_b32 v2, 4, v1")
    a("v_lshlrev_b32 v3, 4, v1")
    a("s_and_b32 s58, s3, 1")
    a("s_cmp_lt_u32 s3, 4")
    a("s_cbranch_scc1 L_compute")

    def att_setup():
        a("s_lshl_b32 s54, s5, 7")
        a("s_load_dword s52, s[50:51], s54")
        a("s_cmp_ge_u32 s3, 3")
        a("s_cselect_b32 s60, 1, 0")
        a("s_mul_i32 s54, s60, 3")
        a("s_sub_u32 s61, s3, s54")
        a("v_and_b32 v16, 15, v1")
        a("v_lshrrev_b32 v17, 1, v2")
        a("v_xor_b32 v17, v17, v16")
        a("v_lshlrev_b32 v17, 4, v17")
        a("v_lshl_add_u32 v17, v16, 8, v17")
        a("v_and_b32 v18, 1, v2")
        a("v_lshl_add_u32 v17, v18, 3, v17")
        a("s_mul_i32 s54, s60, 12288")
        a(f"s_add_u32 s54, s54, {KVB}")
        a(f"v_add_u32 v{KA}, s54, v17")
        a("v_bfe_u32 v16, v1, 2, 2")
        a("v_lshl_add_u32 v17, v2, 2, v16")
        a("v_and_b32 v16, 7, v17")
        a("v_lshlrev_b32 v17, 8, v17")
        a("v_lshl_add_u32 v17, v16, 5, v17")
        a("v_and_b32 v16, 3, v1")
        a("v_lshl_add_u32 v17, v16, 3, v17")
        a("s_add_u32 s54, s54, 24576")
        a(f"v_add_u32 v{VA}, s54, v17")
        a("s_lshl_b32 s54, s5, 3")
        a("s_add_u32 s54, s54, s6")
        a("s_lshl_b32 s55, s54, 7")
        a(f"s_add_u32 s68, s55, {WS_HELLO}")
        a("s_lshl_b32 s55, s54, 8")
        a(f"s_add_u32 s62, s55, {WS_FLAG1}")
        a("s_lshl_b32 s54, s60, 7")
        a("s_add_u32 s64, s62, s54")
        a("s_lshl_b32 s54, s5, 5")
        a("s_add_u32 s54, s54, s4")
        a("s_mul_i32 s54, s54, 24576")
        a("s_lshl_b32 s55, s3, 12")
        a("s_add_u32 s54, s54, s55")
        a(f"s_add_u32 s63, s54, {WS_O}")
        a("s_add_u32 s36, s7, s5")
        a("s_and_b32 s36, s36, 3")
        a("s_lshr_b32 s37, s5, 2")
        a(f"s_add_u32 s55, s55, {QB_LDS}")
        a("v_add_u32 v16, s55, v3")
        a("s_mul_i32 s54, s7, 3")
        a("s_add_u32 s54, s54, s61")
        a("s_lshl_b32 s54, s54, 2")
        a("v_mov_b32 v17, s54")
        a("s_lshl_b32 s54, s5, 2")
        a("s_add_u32 s54, s54, s36")
        a(f"s_mul_i32 s54, s54, {8*PSZ}")
        a(f"s_add_u32 s43, s54, {WS_PART}")
        a("s_waitcnt lgkmcnt(0)")
        a("s_mul_i32 s52, s52, 0x41C64E6D")
        a("s_add_u32 s52, s52, 0x3039")
        a("v_mov_b32 v18, s52")
        if local:
            a("s_getreg_b32 s54, hwreg(HW_REG_XCC_ID, 0, 4)")
            a("s_lshl_b32 s54, s54, 8")
            a("s_or_b32 s54, s54, 0x5a")
            a("s_xor_b32 s67, s52, s54")
    def kvreads():
        L = []
        for x in range(8):
            t = TA_ + (x & 1)
            L.append(f"v_xor_b32 v{t}, {x*32}, v{KA}")
            for kt in range(3):
                r = KF + (kt * 4 + (x >> 1)) * 4 + (x & 1) * 2
                L.append(f"ds_read_b64 v[{r}:{r+1}], v{t} offset:{kt*4096}")
        for t8 in range(8):
            t = TA_ + (t8 & 1)
            L.append(f"v_xor_b32 v{t}, {t8*32}, v{VA}")
            for kt in range(3):
                r = (VT32 + 4 * t8 + 2 * kt) if kt < 2 else (VT16 + 2 * t8)
                L.append(f"ds_read_b64_tr_b16 v[{r}:{r+1}], v{t} offset:{kt*4096}")
        return L
    def hello_load():
        return ["v_and_b32 v20, 3, v1", "v_lshlrev_b32 v20, 2, v20",
                f"buffer_load_dword v{HV}, v20, s[32:35], s68 offen sc1"]
    KVL = kvreads()
    sched = {c: [] for c in range(10)}
    groups = [(kvpos + 1, KVL[4*k:4*k+4]) for k in range(8)] + [(vpos + 1, KVL[32+4*k:32+4*k+4]) for k in range(8)]
    for start, grp in sorted(groups, key=lambda t: -t[0]):
        best = min(range(start, kvlast + 1), key=lambda c: (len(sched[c]), c))
        sched[best] += grp

    vm = VM(a)
    a(f"s_setprio {lprio}")
    a("s_and_b32 s59, s3, 3")
    if oldskew:
        a("s_mul_i32 s53, s7, 3")
        a("s_add_u32 s53, s53, s5")
        a("s_add_u32 s53, s53, s6")
    else:
        a("s_lshr_b32 s53, s5, 2")
        a("s_add_u32 s53, s53, s5")
        a("s_add_u32 s53, s53, s6")
        a("s_add_u32 s69, s53, 4")
        a("s_mul_i32 s54, s7, 5")
        a("s_lshr_b32 s54, s54, 1")
        a("s_add_u32 s53, s53, s54")
    for _ in range(2):
        a("s_cmp_ge_u32 s53, 10")
        a("s_cselect_b32 s54, 10, 0")
        a("s_sub_u32 s53, s53, s54")
    a("v_lshrrev_b32 v20, 3, v1")
    a("v_and_b32 v21, 7, v1")
    a("v_xor_b32 v21, v21, v2")
    a("s_mul_i32 s54, s5, 96")
    a("s_mul_i32 s55, s59, 24")
    a("s_add_u32 s54, s54, s55")
    a("v_add_u32 v20, s54, v20")
    a("v_mul_u32_u24 v20, 1280, v20")
    a("s_lshl_b32 s55, s58, 2")
    a("v_xor_b32 v22, s55, v21")
    a("v_xor_b32 v23, 4, v22")
    a("v_lshl_add_u32 v4, v22, 4, v20")
    a("v_lshl_add_u32 v5, v23, 4, v20")
    a(f"v_add_u32 v5, {10240-1024}, v5")
    a(f"v_add_u32 v6, {2*(10240-1024)}, v4")
    a("v_and_b32 v20, 15, v1")
    a("v_lshlrev_b32 v21, 1, v2")
    a("v_xor_b32 v20, v20, v21")
    a("s_lshl_b32 s54, s59, 4")
    a("v_add_u32 v21, s54, v2")
    a("v_lshlrev_b32 v21, 13, v21")
    a("s_lshl_b32 s54, s4, 8")
    a("v_add_u32 v21, s54, v21")
    a("v_lshl_add_u32 v7, v20, 4, v21")
    a(f"v_add_u32 v8, {32768-1024}, v7")
    a("v_xor_b32 v20, 8, v20")
    a("v_lshl_add_u32 v9, v20, 4, v21")
    a(f"v_add_u32 v9, {2*(32768-1024)}, v9")
    a(f"v_add_u32 v10, {32768-1024}, v9")
    a("s_mul_i32 s56, s59, 3072")
    a("s_lshl_b32 s57, s59, 12")
    a(f"s_add_u32 s57, s57, {XB}")
    a("s_waitcnt lgkmcnt(0)")
    srd(a, 8, 36, X_BYTES)
    srd(a, 20, 42, WQ_BYTES)

    def issue_chunk(c):
        sl = SLOT[c % 3]
        a("s_lshl_b32 s54, s53, 7")
        a(f"s_add_u32 m0, s56, {sl}")
        a("s_lshl_b32 s55, s53, 19")
        for i in range(3):
            a(f"buffer_load_dwordx4 v{4+i}, s[8:11], s54 offen offset:{i*1024} lds")
        a(f"s_add_u32 m0, s57, {sl}")
        a("s_add_u32 s53, s53, 1")
        for i in range(4):
            a(f"buffer_load_dwordx4 v{7+i}, s[20:23], s55 offen offset:{i*1024} lds")
        vm.issue(("c", c), 7)
        a("s_cmp_ge_u32 s53, 10")
        a("s_cselect_b32 s53, 0, s53")
    def issue_kv(which):
        sr = "s[12:15]" if which == 0 else "s[16:19]"
        for i in range(6):
            if i % 4 == 0:
                a(f"s_add_u32 m0, s65, {KVB + which*24576 + i*1024}")
                a(f"s_add_u32 s54, s66, {i*1024}")
            vo = f"v{11 + (i & 3)}" if which == 0 else f"v{[15, 19][i & 1]}"
            a(f"buffer_load_dwordx4 {vo}, {sr}, s54 offen offset:{(i%4)*1024} lds")
        vm.issue("kv", 6)
    issue_chunk(0)
    issue_chunk(1)
    if xtouch:
        a("s_lshr_b32 s54, s7, 1")
        a("s_mul_i32 s54, s54, 5")
        a("s_add_u32 s69, s69, s54")
        for _ in range(2):
            a("s_cmp_ge_u32 s69, 10")
            a("s_cselect_b32 s54, 10, 0")
            a("s_sub_u32 s69, s69, s54")
        a("s_lshl_b32 s69, s69, 7")
        a("s_and_b32 s54, s7, 1")
        a("s_mul_i32 s54, s54, 48")
        a("s_mul_i32 s55, s59, 12")
        a("s_add_u32 s54, s54, s55")
        a("s_mul_i32 s55, s5, 96")
        a("s_add_u32 s54, s54, s55")
        a("v_min_u32 v20, 11, v1")
        a("v_add_u32 v20, s54, v20")
        a("v_mul_u32_u24 v20, 1280, v20")
        a("buffer_load_dword v29, v20, s[8:11], s69 offen")
        vm.issue("xt")
    srd(a, 12, 38, KV_BYTES)
    srd(a, 16, 40, KV_BYTES)
    srd(a, 32, 50, WS_BYTES)
    srd(a, 24, 44, WO_BYTES)
    srd(a, 28, 46, OUT_BYTES)
    a("s_lshr_b32 s55, s59, 1")
    a("s_lshl_b32 s54, s5, 1")
    a("s_add_u32 s54, s54, s55")
    a("s_lshl_b32 s54, s54, 5")
    a("s_add_u32 s54, s54, s4")
    a("s_mul_i32 s54, s54, 12288")
    a("s_mul_i32 s55, s58, 6144")
    a("s_add_u32 s66, s54, s55")
    a("s_mul_i32 s65, s59, 6144")
    a("v_lshlrev_b32 v20, 4, v2")
    a("v_xor_b32 v20, v3, v20")
    for i in range(4):
        a(f"s_lshl_b32 s54, s58, 1")
        a(f"s_add_u32 s54, s54, {i}")
        a("s_and_b32 s54, s54, 3")
        a("s_lshl_b32 s54, s54, 6")
        a(f"v_xor_b32 v{11+i}, s54, v20")
    a("v_lshlrev_b32 v20, 5, v2")
    a("v_xor_b32 v15, v3, v20")
    a("v_xor_b32 v19, 128, v15")
    att_setup()
    WOV = 24
    for i in range(5):
        a(f"v_add_u32 v20, {64*i}, v1")
        a("v_mul_u32_u24 v21, 52429, v20")
        a("v_lshrrev_b32 v21, 20, v21")
        a("v_mul_u32_u24 v23, 20, v21")
        a("v_sub_u32 v20, v20, v23")
        a("v_bfe_u32 v23, v21, 2, 1")
        a("v_lshlrev_b32 v23, 1, v23")
        a("v_xor_b32 v20, v23, v20")
        a("v_mul_u32_u24 v21, 1280, v21")
        a(f"v_lshl_add_u32 v{WOV+i}, v20, 4, v21")
        if 0 < i < 4:
            a(f"v_subrev_u32 v{WOV+i}, {1024*i}, v{WOV+i}")
    a("s_mul_i32 s40, s6, 655360")
    a("s_mul_i32 s54, s36, 320")
    a("s_add_u32 s40, s40, s54")
    a("s_mul_i32 s54, s59, 20480")
    a("s_add_u32 s38, s40, s54")
    a("s_mul_i32 s39, s59, 5120")
    a("s_mul_i32 s54, s58, 20480")
    a("s_add_u32 s40, s40, s54")
    a("s_mul_i32 s41, s58, 5120")
    for r in (0, 1, 2, 11, 13, 14):
        a(f"v_mov_b32 v{PA+r}, 0")
    a("s_lshl_b32 s54, s2, 2")
    a("s_add_u32 s54, s54, s59")
    a("s_lshl_b32 s54, s54, 7")
    a(f"s_add_u32 s69, s54, {WS_FLAG2}")

    def issue_wo(m, thr=None, four=False):
        k = ORDER.index(m)
        a(f"s_add_u32 s54, s7, {k>>1}")
        a("s_and_b32 s54, s54, 3")
        a("s_lshl_b32 s54, s54, 1")
        a(f"s_xor_b32 s55, s37, {k&1}")
        a("s_add_u32 s54, s54, s55")
        a("s_mul_i32 s54, s54, 81920")
        a(f"s_add_u32 s54, s54, {'s38' if four else 's40'}")
        lb = "s39" if four else "s41"
        for blk in range(1 if four else 2):
            a(f"s_add_u32 m0, {lb}, {m*WOCH + blk*10240}")
            if blk: a("s_add_u32 s54, s54, 40960")
            else: a("s_nop 0")
            for i in range(5):
                if thr is not None:
                    a(f"s_waitcnt vmcnt({thr-1})")
                if i == 4:
                    a(f"s_add_u32 m0, {lb}, {m*WOCH + blk*10240 + 4096}")
                    a("s_nop 0")
                    a(f"buffer_load_dwordx4 v{WOV+i}, s[24:27], s54 offen lds")
                else:
                    a(f"buffer_load_dwordx4 v{WOV+i}, s[24:27], s54 offen offset:{i*1024} lds")
        vm.issue(("wo", m), 5 if four else 10)
    def extras(c):
        if c == kvpos: issue_kv(0)
        if c == vpos: issue_kv(1)
        if c == wo7pos: issue_wo(7, four=True)
    extras(1)
    def ld_kv(c):
        part = sched[c]
        if not part: return
        l = a.label("L_nokv")
        a("s_cmp_ge_u32 s3, 6")
        a(f"s_cbranch_scc1 {l}")
        for r in part: a(r)
        a(f"{l}:")
    for c in range(8):
        vm.wait(("c", c))
        a("s_barrier")
        stamp(lst and c % 2 == 0)
        issue_chunk(c + 2)
        extras(c + 2)
        ld_kv(c)
    vm.wait(("c", 8))
    a("s_cmp_ge_u32 s3, 6")
    a("s_cbranch_scc1 L_wo_loader")
    a("s_barrier")
    if local:
        for l in hello_load(): a(l)
    for r in sched[8]: a(r)
    a(f"s_waitcnt vmcnt({1 if local else 0}) lgkmcnt(0)")
    a("s_barrier")
    for r in sched[9]: a(r)
    a("s_waitcnt lgkmcnt(0)")
    a("s_branch L_attn")
    a("L_wo_loader:")
    a("s_barrier")
    stamp(lst)
    issue_wo(3)
    vm.wait(("c", 9))
    a("s_barrier")
    stamp(lst)
    a(f"s_setprio {lprio2}")
    for m in at9: issue_wo(m)
    a("s_barrier")
    for m in atq: issue_wo(m, throttle)
    vm.wait(("wo", 3))
    stamp(lst)
    a("s_barrier")
    a("s_barrier")
    for m in ORDER[2:]:
        if m not in at9 and m not in atq:
            issue_wo(m, throttle)
    a("s_waitcnt vmcnt(0)")
    stamp(lst)

    a("L_reducer:")
    a("s_barrier")
    a("s_setprio 0")
    a("v_and_b32 v22, 7, v1")
    a("v_lshlrev_b32 v22, 2, v22")
    a("buffer_load_dword v23, v22, s[32:35], s69 offen sc1")
    a("s_lshr_b32 s60, s6, 2")
    a("s_and_b32 s61, s6, 3")
    a("s_lshr_b32 s40, s59, 1")
    a("v_bfe_u32 v7, v1, 2, 2")
    a("v_and_b32 v8, 3, v1")
    a("s_lshl_b32 s54, s58, 2")
    a("v_add_u32 v9, s54, v2")
    a("v_lshlrev_b32 v4, 10, v9")
    a("v_lshl_add_u32 v4, v8, 6, v4")
    a("v_lshl_add_u32 v4, v7, 4, v4")
    a("s_lshl_b32 s54, s60, 1")
    a("s_add_u32 s54, s54, s40")
    a("s_lshl_b32 s54, s54, 13")
    a("s_lshl_b32 s55, s61, 8")
    a("s_add_u32 s54, s54, s55")
    a("s_add_u32 s43, s43, s54")
    a("v_lshlrev_b32 v9, 1, v9")
    a("v_add_u32 v10, 1, v9")
    for (f, d) in ((9, 5), (10, 6)):
        a(f"v_mul_u32_u24 v13, 43, v{f}")
        a("v_lshrrev_b32 v13, 7, v13")
        a("v_mul_u32_u24 v14, 3, v13")
        a(f"v_sub_u32 v14, v{f}, v14")
        a("v_lshl_add_u32 v14, v14, 4, v7")
        a("v_mul_u32_u24 v14, 1280, v14")
        a(f"v_lshl_add_u32 v{d}, v13, 5, v14")
        a(f"v_lshl_add_u32 v{d}, v8, 3, v{d}")
    a("v_cmp_gt_u32 s[38:39], 15, v10")
    a("s_mul_i32 s54, s5, 96")
    a("s_mul_i32 s55, s60, 48")
    a("s_add_u32 s54, s54, s55")
    a("s_lshl_b32 s55, s61, 2")
    a("s_add_u32 s54, s54, s55")
    a("s_mul_i32 s54, s54, 1280")
    a("s_mul_i32 s55, s36, 320")
    a("s_add_u32 s54, s54, s55")
    a("s_mul_i32 s55, s40, 160")
    a("s_add_u32 s60, s54, s55")
    for src in range(8):
        a(f"s_add_u32 s{8+src}, s43, {src*PSZ}")
    a("s_mov_b32 s42, 0xffff0000")
    a("s_mov_b32 s53, 0")
    a("s_mov_b32 s61, 0")
    a("s_barrier")
    stamp(lst)
    a("L_poll2:")
    a("buffer_load_dword v23, v22, s[32:35], s69 offen sc1")
    a("s_add_u32 s53, s53, 1")
    a("s_cmp_ge_u32 s53, 0x100000")
    a("s_cbranch_scc1 L_got2")
    a("s_waitcnt vmcnt(0)")
    a("v_cmp_eq_u32 vcc, s52, v23")
    a("s_and_b32 s54, vcc_lo, 0xff")
    a("s_andn2_b32 s54, s54, s61")
    a("s_cbranch_scc0 L_poll2")
    a("s_or_b32 s61, s61, s54")
    for src in range(8):
        l = a.label("L_ns")
        a(f"s_bitcmp1_b32 s54, {src}")
        a(f"s_cbranch_scc0 {l}")
        r = 24 + 4 * src
        a(f"buffer_load_dwordx4 v[{r}:{r+3}], v4, s[32:35], s{8+src} offen sc1")
        a(f"{l}:")
    a("s_cmp_lg_u32 s61, 0xff")
    a("s_cbranch_scc1 L_poll2")
    a("L_got2:")
    stamp(lst)
    a("s_waitcnt vmcnt(0)")
    for src in range(8):
        r = 24 + 4 * src
        for k in range(4):
            b = 64 if src == 0 else 72
            a(f"v_lshlrev_b32 v{b+2*k}, 16, v{r+k}")
            a(f"v_and_b32 v{b+1+2*k}, s42, v{r+k}")
        if src:
            for k in range(4):
                a(f"v_pk_add_f32 v[{64+2*k}:{65+2*k}], v[{64+2*k}:{65+2*k}], v[{72+2*k}:{73+2*k}]")
    for k in range(4):
        a(f"v_cvt_pk_bf16_f32 v{80+k}, v{64+2*k}, v{65+2*k}")
    a(f"buffer_store_dwordx2 v[80:81], v5, s[28:31], s60 offen{outfl}")
    a("s_mov_b64 exec, s[38:39]")
    a(f"buffer_store_dwordx2 v[82:83], v6, s[28:31], s60 offen{outfl}")
    a("s_mov_b64 exec, -1")
    a("s_and_b32 s54, s2, 31")
    a("s_or_b32 s54, s54, s59")
    a("s_cmp_lg_u32 s54, 0")
    a("s_cbranch_scc1 L_noep")
    a("s_lshl_b32 s54, s5, 7")
    a("v_mov_b32 v20, 0")
    a("s_mov_b64 exec, 1")
    a("buffer_store_dword v18, v20, s[32:35], s54 offen sc1")
    a("s_mov_b64 exec, -1")
    a("L_noep:")
    if stamps and lst:
        a("s_waitcnt vmcnt(0)")
        stamp()
        store_stamps(nstamp[0])
    a("s_endpgm")
    nl = nstamp[0]
    if stamps:
        nstamp[0] = 1

    a("L_compute:")
    vm = VM(a)
    e = Emit(a)
    a("s_lshr_b32 s59, s3, 1")
    a("v_and_b32 v20, 15, v1")
    a("v_lshrrev_b32 v21, 1, v20")
    a("v_xor_b32 v21, v21, v2")
    a("s_mul_i32 s54, s59, 48")
    a("v_add_u32 v20, s54, v20")
    a("v_lshlrev_b32 v20, 7, v20")
    a("v_lshl_add_u32 v4, v21, 4, v20")
    a("v_xor_b32 v5, 64, v4")
    a(f"v_add_u32 v6, {HI}, v4")
    a(f"v_add_u32 v7, {HI}, v5")
    a("v_bfe_u32 v20, v1, 2, 2")
    a("v_and_b32 v21, 1, v2")
    a("v_lshl_or_b32 v21, v21, 2, v20")
    a("s_lshl_b32 s54, s58, 2")
    a("v_xor_b32 v21, s54, v21")
    a("v_lshl_add_u32 v23, v2, 3, v20")
    a("v_lshlrev_b32 v23, 8, v23")
    a("v_and_b32 v22, 3, v1")
    a("v_lshl_add_u32 v23, v22, 3, v23")
    a(f"v_add_u32 v23, {XB}, v23")
    for T in range(4):
        a(f"v_xor_b32 v22, {T}, v21")
        a(f"v_lshl_add_u32 v{8+T}, v22, 5, v23")
        a(f"v_add_u32 v{12+T}, {HI}, v{8+T}")
    a("s_waitcnt lgkmcnt(0)")
    srd(a, 32, 50, WS_BYTES)
    srd(a, 28, 46, OUT_BYTES)
    att_setup()
    a("v_mov_b32 v21, 0")
    a("s_lshl_b32 s54, s59, 7")
    a("s_add_u32 s62, s62, s54")
    a("buffer_load_dword v22, v21, s[32:35], s62 offen sc1")
    if local:
        a("s_cmp_lg_u32 s3, 0")
        a("s_cbranch_scc1 L_nohello")
        a("s_lshl_b32 s54, s7, 2")
        a("v_mov_b32 v20, s54")
        a("v_mov_b32 v21, s67")
        a("s_mov_b64 exec, 1")
        a("buffer_store_dword v21, v20, s[32:35], s68 offen sc1")
        a("s_mov_b64 exec, -1")
        a("L_nohello:")
    a("s_lshl_b32 s54, s5, 5")
    a("s_lshl_b32 s55, s6, 2")
    a("s_add_u32 s54, s54, s55")
    a("s_mul_i32 s54, s54, 24576")
    a("s_mul_i32 s55, s59, 12288")
    a("s_add_u32 s54, s54, s55")
    a(f"s_add_u32 s54, s54, {WS_O}")
    a(f"v_add_u32 v{PA}, s54, v3")
    a(f"v_add_u32 v{PA+1}, 4096, v{PA}")
    a(f"v_add_u32 v{PA+2}, 8192, v{PA}")
    a("v_bfe_u32 v19, v1, 2, 2")
    a("v_lshl_add_u32 v19, v2, 2, v19")
    a("v_mul_u32_u24 v19, 320, v19")
    a("v_and_b32 v20, 3, v1")
    a("v_lshl_add_u32 v19, v20, 3, v19")
    a("s_mul_i32 s54, s58, 160")
    a("v_add_u32 v19, s54, v19")
    a("v_and_b32 v20, 1, v2")
    a("v_lshlrev_b32 v20, 5, v20")
    a("v_add_u32 v21, v19, v20")
    a("v_sub_u32 v20, v19, v20")
    a("s_cmp_eq_u32 s58, 0")
    a("s_cselect_b64 vcc, -1, 0")
    a(f"v_cndmask_b32 v{PA+3}, v20, v21, vcc")
    a(f"v_cndmask_b32 v{PA+4}, v21, v20, vcc")
    a(f"v_add_u32 v{PA+5}, {3*WOCH}, v{PA+3}")
    a(f"v_add_u32 v{PA+6}, {3*WOCH}, v{PA+4}")
    a(f"v_add_u32 v{PA+7}, {6*WOCH}, v{PA+3}")
    a(f"v_add_u32 v{PA+8}, {6*WOCH}, v{PA+4}")
    a("s_mul_i32 s54, s59, 12288")
    a(f"s_add_u32 s54, s54, {QB_LDS}")
    a("s_lshl_b32 s55, s37, 11")
    a("s_add_u32 s55, s54, s55")
    a(f"v_add_u32 v{PA+9}, s55, v3")
    a(f"v_xor_b32 v{PA+10}, 2048, v{PA+9}")
    a(f"v_min_u32 v{PA+11}, 11, v1")
    a(f"v_lshlrev_b32 v{PA+11}, 2, v{PA+11}")
    a("s_lshl_b32 s55, s58, 11")
    a("s_add_u32 s54, s54, s55")
    a(f"v_add_u32 v{PA+12}, s54, v3")
    a("v_bfe_u32 v19, v1, 2, 2")
    a("v_lshl_add_u32 v19, v19, 2, v2")
    a("v_and_b32 v20, 3, v1")
    a("v_lshlrev_b32 v20, 4, v20")
    a(f"v_lshl_add_u32 v{PA+13}, v19, 6, v20")
    a("v_lshrrev_b32 v19, 1, v1")
    a("v_and_b32 v20, 1, v1")
    a("v_lshlrev_b32 v20, 7, v20")
    a(f"v_lshl_add_u32 v{PA+14}, v19, 9, v20")
    a(f"s_mul_i32 s54, s6, {PSZ}")
    a("s_add_u32 s65, s43, s54")
    a("s_lshl_b32 s54, s3, 13")
    a("s_add_u32 s65, s65, s54")
    a("s_add_u32 s66, s65, 4096")
    a("s_andn2_b32 s55, s2, 7")
    a("s_lshl_b32 s54, s59, 2")
    a("s_add_u32 s55, s55, s54")
    a("s_lshl_b32 s55, s55, 2")
    a("s_lshl_b32 s54, s58, 1")
    a("s_add_u32 s55, s55, s54")
    a("s_lshl_b32 s55, s55, 7")
    a("s_lshl_b32 s54, s6, 2")
    a("s_add_u32 s55, s55, s54")
    a(f"s_add_u32 s69, s55, {WS_FLAG2}")
    for k in range(2, 8):
        a(f"s_add_u32 s55, s7, {k>>1}")
        a("s_and_b32 s55, s55, 3")
        a("s_mul_i32 s55, s55, 24576")
        a(f"s_xor_b32 s54, s37, {k&1}")
        a("s_lshl_b32 s54, s54, 11")
        a(f"s_add_u32 s{6+k}, s54, s55")

    def fa(s, T): return s * 28 + T * 4
    def fb(s, qt): return s * 28 + 16 + qt * 4
    def reads(c, s):
        hi = (c % 3) == 1
        off0 = 0 if hi else SLOT[c % 3]
        L = []
        def A(T):
            ad = (12 if hi else 8) + T
            for hf in range(2):
                r = fa(s, T) + 2 * hf
                L.append(f"ds_read_b64_tr_b16 a[{r}:{r+1}], v{ad} offset:{off0 + (32*s + 4*hf)*256}")
        A(0)
        for qt in range(3):
            ad = (6 if hi else 4) + s
            r = fb(s, qt)
            L.append(f"ds_read_b128 a[{r}:{r+3}], v{ad} offset:{off0 + qt*2048}")
        for T in range(1, 4): A(T)
        return L
    def mfmas(c, s):
        L = []
        for T in range(4):
            for qt in range(3):
                d = ACC + (T * 3 + qt) * 4
                A = fa(s, T); B = fb(s, qt)
                C = "0" if (c == 0 and s == 0) else f"v[{d}:{d+3}]"
                L.append(f"v_mfma_f32_16x16x32_bf16 v[{d}:{d+3}], a[{A}:{A+3}], a[{B}:{B+3}], {C}")
        return L
    def dense(M, R, X=(), per=2):
        R = list(R); X = list(X)
        for i, m in enumerate(M):
            e(m)
            for _ in range(per):
                if R: e(R.pop(0))
                elif X: e(X.pop(0))
        for x in R + X: e(x)
    for c in range(10):
        a("s_barrier")
        part = sched[c]
        hp = (len(part) // 8) * 4
        X0 = part[:hp]; X1 = part[hp:]
        if c == 8 and local:
            X0 = hello_load() + X0
        if c == 0:
            for r in reads(0, 0): e(r)
        else:
            dense(mfmas(c - 1, 1), reads(c, 0), X0)
        dense(mfmas(c, 0), reads(c, 1), X1)
        if c < 9:
            e.drain()
    stamp(cst)
    def qcvt(s, qt):
        A0 = ACC + ((2 * s) * 3 + qt) * 4
        B0 = ACC + ((2 * s + 1) * 3 + qt) * 4
        return [f"v_cvt_pk_bf16_f32 v{A0}, v{A0}, v{A0+1}",
                f"v_cvt_pk_bf16_f32 v{A0+1}, v{A0+2}, v{A0+3}",
                f"v_cvt_pk_bf16_f32 v{A0+2}, v{B0}, v{B0+1}",
                f"v_cvt_pk_bf16_f32 v{A0+3}, v{B0+2}, v{B0+3}",
                f"ds_write_b128 v{PA+12}, v[{A0}:{A0+3}] offset:{qt*4096 + s*1024}"]
    for m in mfmas(9, 1): e(m)
    a("s_nop 1")
    for s in range(2):
        for qt in range(3):
            for x in qcvt(s, qt): e(x)
    e.drain()

    a("L_attn:")
    a(f"s_setprio {aprio}")
    a("s_barrier")
    stamp(cst)
    for s in range(4):
        e(f"ds_read_b128 v[{QB+4*s}:{QB+4*s+3}], v16 offset:{s*1024}")
    SA = 24; PF = 36; LS = 44; ONE = 48; MX = 52; TM = 53; OA = 72; OPK = 104
    for r in range(4):
        a(f"v_mov_b32 v{ONE+r}, 0x3f803f80")
    cexp = math.log2(math.e) / math.sqrt(128.0)
    cbits = struct.unpack("<I", struct.pack("<f", cexp))[0]
    a(f"s_mov_b32 s14, {cbits:#x}")
    for s in range(4):
        for kt in range(3):
            d = SA + 4 * kt
            A = KF + (kt * 4 + s) * 4
            C = "0" if s == 0 else f"v[{d}:{d+3}]"
            e(f"v_mfma_f32_16x16x32_bf16 v[{d}:{d+3}], v[{A}:{A+3}], v[{QB+4*s}:{QB+4*s+3}], {C}")
    if local:
        a("s_waitcnt vmcnt(0)")
        a(f"v_cmp_ne_u32 vcc, s67, v{HV}")
        a("s_mov_b64 s[56:57], vcc")
        a("s_nop 2")
    else:
        a("s_nop 5")
    a(f"v_max3_f32 v{MX}, v{SA}, v{SA+1}, v{SA+2}")
    a(f"v_max3_f32 v{TM}, v{SA+3}, v{SA+4}, v{SA+5}")
    a(f"v_max3_f32 v{MX}, v{MX}, v{SA+6}, v{SA+7}")
    a(f"v_max3_f32 v{TM}, v{TM}, v{SA+8}, v{SA+9}")
    a(f"v_max3_f32 v{MX}, v{MX}, v{SA+10}, v{SA+11}")
    a(f"v_max_f32 v{MX}, v{MX}, v{TM}")
    for sw in ("v_permlane32_swap_b32", "v_permlane16_swap_b32"):
        a(f"v_mov_b32 v{TM}, v{MX}")
        a("s_nop 1")
        a(f"{sw} v{MX}, v{TM}")
        a("s_nop 1")
        a(f"v_max_f32 v{MX}, v{MX}, v{TM}")
    a(f"v_mul_f32 v{MX}, s14, v{MX}")
    for k in range(12):
        a(f"v_fma_f32 v{SA+k}, v{SA+k}, s14, -v{MX}")
    for k in range(8):
        a(f"v_exp_f32 v{SA+k}, v{SA+k}")
    a(f"v_exp_f32 v{SA+8}, v{SA+8}")
    for k in range(4):
        a(f"v_cvt_pk_bf16_f32 v{PF+k}, v{SA+2*k}, v{SA+2*k+1}")
    a(f"v_exp_f32 v{SA+9}, v{SA+9}")
    a(f"v_exp_f32 v{SA+10}, v{SA+10}")
    stamp(cst and fine)
    X = [f"v_exp_f32 v{SA+11}, v{SA+11}", None, f"v_cvt_pk_bf16_f32 v{PF+4}, v{SA+8}, v{SA+9}",
         f"v_cvt_pk_bf16_f32 v{PF+5}, v{SA+10}, v{SA+11}"]
    a(f"v_mfma_f32_16x16x32_bf16 v[{LS}:{LS+3}], v[{ONE}:{ONE+3}], v[{PF}:{PF+3}], 0")
    for t in range(8):
        if X:
            x = X.pop(0)
            if x: a(x)
        d = OA + 4 * t
        a(f"v_mfma_f32_16x16x32_bf16 v[{d}:{d+3}], v[{VT32+4*t}:{VT32+4*t+3}], v[{PF}:{PF+3}], 0")
    a(f"v_mfma_f32_16x16x16_bf16 v[{LS}:{LS+3}], v[{ONE}:{ONE+1}], v[{PF+4}:{PF+5}], v[{LS}:{LS+3}]")
    for t in range(8):
        d = OA + 4 * t
        a(f"v_mfma_f32_16x16x16_bf16 v[{d}:{d+3}], v[{VT16+2*t}:{VT16+2*t+1}], v[{PF+4}:{PF+5}], v[{d}:{d+3}]")
    a(f"v_rcp_f32 v{MX}, v{LS}")
    a("s_nop 0")
    a(f"v_mov_b32 v{TM}, v{MX}")
    for u in range(4):
        for tt in range(2):
            d = OA + 4 * (2 * u + tt)
            a(f"v_pk_mul_f32 v[{d}:{d+1}], v[{d}:{d+1}], v[{MX}:{TM}]")
            a(f"v_pk_mul_f32 v[{d+2}:{d+3}], v[{d+2}:{d+3}], v[{MX}:{TM}]")
            a(f"v_cvt_pk_bf16_f32 v{OPK+4*u+2*tt}, v{d}, v{d+1}")
            a(f"v_cvt_pk_bf16_f32 v{OPK+4*u+2*tt+1}, v{d+2}, v{d+3}")
        a(f"buffer_store_dwordx4 v[{OPK+4*u}:{OPK+4*u+3}], v3, s[32:35], s63 offen offset:{u*1024} sc1")
        a(f"ds_write_b128 v16, v[{OPK+4*u}:{OPK+4*u+3}] offset:{u*1024}")
    def flag1_store():
        a("s_waitcnt vmcnt(0)")
        a("s_mov_b64 exec, 1")
        if local:
            l1 = a.label("L_fg"); l2 = a.label("L_fd")
            a("s_cmp_lg_u64 s[56:57], 0")
            a(f"s_cbranch_scc1 {l1}")
            a("buffer_store_dword v18, v17, s[32:35], s64 offen")
            a(f"s_branch {l2}")
            a(f"{l1}:")
        a("buffer_store_dword v18, v17, s[32:35], s64 offen sc1")
        if local:
            a(f"{l2}:")
        a("s_mov_b64 exec, -1")
    stamp(cst)
    a("s_cmp_lt_u32 s3, 4")
    a("s_cbranch_scc1 L_p2")
    a("s_waitcnt lgkmcnt(0)")
    a("s_barrier")
    a("s_barrier")
    flag1_store()
    a("s_branch L_reducer")
    a("L_p2:")

    e.q = []
    ACC2 = 24
    WF = 128
    PK = 88
    NST = 5
    def bslot(ks, qt): return ((ks % NST) * 3 + qt) * 4
    def wreads(ks):
        m, u = ORDER[ks >> 1], ks & 1
        b = ks % 2
        L = []
        for nt in range(5):
            ad = PA + 3 + 2 * (m // 3) + (nt & 1)
            for hf in range(2):
                r = WF + b * 20 + nt * 4 + 2 * hf
                off = (m % 3) * WOCH + (32 * u + 16 * hf) * 320 + 32 * nt
                L.append(f"ds_read_b64_tr_b16 v[{r}:{r+1}], v{ad} offset:{off}")
        return L
    def treads(nt):
        L = []
        b = nt % 2
        for ks in range(12, 16):
            m, u = ORDER[ks >> 1], ks & 1
            ad = PA + 3 + 2 * (m // 3) + (nt & 1)
            for hf in range(2):
                r = WF + b * 20 + (ks - 12) * 4 + 2 * hf
                off = (m % 3) * WOCH + (32 * u + 16 * hf) * 320 + 32 * nt
                L.append(f"ds_read_b64_tr_b16 v[{r}:{r+1}], v{ad} offset:{off}")
        return L
    def mf2(ks):
        b = ks % 2
        L = []
        for nt in range(5):
            for qt in range(3):
                d = ACC2 + (nt * 3 + qt) * 4
                A = WF + b * 20 + nt * 4
                B = bslot(ks, qt)
                C = "0" if ks == 0 else f"v[{d}:{d+3}]"
                L.append(f"v_mfma_f32_16x16x32_bf16 v[{d}:{d+3}], v[{A}:{A+3}], a[{B}:{B+3}], {C}")
        return L
    def oloads(ks):
        L = []
        for qt in range(3):
            r = bslot(ks, qt)
            L.append(f"buffer_load_dwordx4 a[{r}:{r+3}], v{PA+qt}, s[32:35], s{6+(ks>>1)} offen offset:{(ks&1)*1024} sc1")
        vm.issue(("O", ks), 3)
        return L
    def emit(M, W, O):
        slots = [[] for _ in M]
        for k, wr in enumerate(W): slots[min(k, len(M) - 1)].append(wr)
        for k, o in enumerate(O): slots[(k * len(M)) // max(len(O), 1)].append(o)
        for m, sl in zip(M, slots):
            e(m)
            for x in sl: e(x)
    for r in wreads(0): e(r)
    e.drain()
    a("s_barrier")
    for ks in range(4):
        for qt in range(3):
            r = bslot(ks, qt)
            e(f"ds_read_b128 a[{r}:{r+3}], v{PA + 9 + (ks >> 1)} offset:{qt*4096 + (ks&1)*1024}")
    e.drain()
    a("s_barrier")
    stamp(cst)
    emit(mf2(0), wreads(1), [])
    flag1_store()
    a(f"buffer_load_dword v23, v{PA+11}, s[32:35], s62 offen sc1")
    emit(mf2(1), wreads(2), [])
    a("s_mov_b32 s53, 0")
    a("s_branch L_chk1")
    a("L_poll1:")
    a(f"buffer_load_dword v23, v{PA+11}, s[32:35], s62 offen sc1")
    a("s_add_u32 s53, s53, 1")
    a("s_cmp_ge_u32 s53, 0x100000")
    a("s_cbranch_scc1 L_got1")
    a("L_chk1:")
    a("s_waitcnt vmcnt(0)")
    a("v_cmp_ne_u32 vcc, s52, v23")
    a("s_cbranch_vccnz L_poll1")
    a("L_got1:")
    a("s_waitcnt vmcnt(0)")
    vm.reset()
    stamp(cst)
    for l in oloads(4): a(l)
    issued = 5
    for ks in range(2, 12):
        if ks == 3:
            a("s_barrier")
            stamp(cst)
        if ks >= 4:
            vm.wait(("O", ks))
        W = wreads(ks + 1) if ks + 1 < 12 else treads(0)
        O = []
        nnew = 0
        while issued < 16 and issued <= ks + odist and nnew < 2:
            O += oloads(issued); issued += 1; nnew += 1
        emit(mf2(ks), W, O)
    assert issued == 16
    def pcvt(f):
        d = ACC2 + f * 4; o = PK + 2 * f
        L = [f"v_cvt_pk_bf16_f32 v{o}, v{d}, v{d+1}", f"v_cvt_pk_bf16_f32 v{o+1}, v{d+2}, v{d+3}"]
        if f % 2 == 1 or f == 14:
            u = f // 2
            L.append(f"buffer_store_dwordx4 v[{PK+4*u}:{PK+4*u+3}], v{PA+13}, s[32:35], {'s65' if u < 4 else 's66'} offen offset:{(u%4)*1024} sc1")
        return L
    for nt in range(5):
        if nt == bant:
            a("s_barrier")
        M = []
        for ks in range(12, 16):
            for qt in range(3):
                d = ACC2 + (nt * 3 + qt) * 4
                A = WF + (nt % 2) * 20 + (ks - 12) * 4
                B = bslot(ks, qt)
                M.append(f"v_mfma_f32_16x16x32_bf16 v[{d}:{d+3}], v[{A}:{A+3}], a[{B}:{B+3}], v[{d}:{d+3}]")
        W = treads(nt + 1) if nt < 4 else []
        X = []
        if nt > 0:
            for qt in range(3): X += pcvt((nt - 1) * 3 + qt)
        slots = [[] for _ in M]
        for k, wr in enumerate(W): slots[k // 2].append(wr)
        st = 4 if W else 6
        for k, x in enumerate(X): slots[min(st + (k * (12 - st)) // len(X), 11)].append(x)
        for k, (m, sl) in enumerate(zip(M, slots)):
            if nt == 0 and k % 3 == 0:
                vm.wait(("O", 12 + k // 3))
            e(m)
            for x in sl: e(x)
    if bant == 5:
        a("s_barrier")
    stamp(cst)
    a("s_nop 5")
    for qt in range(3):
        for x in pcvt(12 + qt): a(x)
    a("s_mov_b64 exec, 0xff")
    a("s_waitcnt vmcnt(0)")
    a(f"buffer_store_dword v18, v{PA+14}, s[32:35], s69 offen sc1")
    if stamps and cst:
        stamp()
        a("s_mov_b64 exec, -1")
        store_stamps(nstamp[0])
    a("L_end:")
    a("s_endpgm")
    txt = HEADER_COMMENTS + f"; @launch grid=(256,1,1) block=(512,1,1) lds={LDS_TOTAL}\n" + a.text()
    txt += '.section .rodata,"a"\n' + kernel_desc(name, 256, 102, 192)
    open(out, "w").write(txt)
    return nl if lst else nstamp[0]

if __name__ == "__main__":
    gen("k10.s")
    gen("k10_sc1.s", outfl=" sc1")
    n = gen("k10a.s", stamps=True)
    nl = gen("k10l.s", stamps=True, swave=6)
    print(n, nl, file=sys.stderr)
```

```python
import sys, math, struct, re
from asmgen import *

WS_EPOCH = 0x0
WS_HELLO = 0x1000
WS_FLAG1 = 0x4000
WS_FLAG2 = 0x20000
WS_O     = 0x100000
WS_PART  = 0x800000
WS_STAMP = 0x8000000

SLOT = [0, 57344, 28672]
HI = 57344
XB = 12288
WOCH = 20480
KVB = 86016
QB_LDS = 36864
LDS_TOTAL = 163840
PSZ = 32768


class VM:
    def __init__(self, a):
        self.a = a; self.ops = []; self.done = -1
    def issue(self, tag, n=1):
        self.ops += [tag] * n
    def wait(self, tag):
        idx = max(i for i, t in enumerate(self.ops) if t == tag)
        if idx <= self.done:
            return
        n = len(self.ops) - 1 - idx
        assert n <= 63, n
        self.a(f"s_waitcnt vmcnt({n})")
        self.done = idx
    def reset(self):
        self.ops = []; self.done = -1


def regs_of(tok):
    m = re.fullmatch(r"([va])\[(\d+):(\d+)\]", tok)
    if m:
        return {(m.group(1), r) for r in range(int(m.group(2)), int(m.group(3)) + 1)}
    m = re.fullmatch(r"([va])(\d+)", tok)
    if m:
        return {(m.group(1), int(m.group(2)))}
    return set()


class Emit:
    def __init__(self, a):
        self.a = a
        self.q = []
    def __call__(self, s):
        for ins in s.split("\n"):
            ins = ins.strip()
            if not ins: continue
            op = ins.split()[0]
            if op.startswith("v_mfma"):
                toks = [t.strip() for t in ins[len(op):].split(",")]
                need = regs_of(toks[1]) | regs_of(toks[2])
                idx = -1
                for i, d in enumerate(self.q):
                    if d & need: idx = i
                if idx >= 0:
                    n = min(len(self.q) - 1 - idx, 14)
                    self.a(f"s_waitcnt lgkmcnt({n})")
                    self.q = self.q[len(self.q) - n:] if n else []
                self.a(ins)
            elif op.startswith("ds_read"):
                toks = [t.strip() for t in ins[len(op):].split(",")]
                self.q.append(regs_of(toks[0]))
                self.a(ins)
            elif op.startswith("ds_"):
                self.q.append(set())
                self.a(ins)
            else:
                self.a(ins)
    def drain(self):
        self.a("s_waitcnt lgkmcnt(0)")
        self.q = []
    def wait_first(self, n_keep):
        if len(self.q) > n_keep:
            self.a(f"s_waitcnt lgkmcnt({min(n_keep, 15)})")
            self.q = self.q[len(self.q) - n_keep:] if n_keep else []


def gen(out, stamps=False, cyc=False, local=True, throttle=12, swave=0, kvpos=3, vpos=5, wo7pos=7,
        padfrom=None, fine=False, look=10, at9=(4, 5), atq=(6, 0, 1), kvlast=8, xtouch=False, lprio=2, lprio2=0, aprio=1, odist=4, bant=5, oldskew=True, outfl='', nocomp=False, allst=False, nokvr=False, st0=False, wqfirst=False, ptouch=0,
        order=(7, 3, 4, 5, 6, 0, 1, 2), at8=(3,), bzks=3, klate=False, noload=False, per=2, f2mode='dyn', f2sep=False, lazy=True, ownpre=2, f2poll='sc1', f2sleep=0, f2st='sc1', f2atom=False, seg1=None, bz2=None, skewrev=False, p2st=False, fronts=3, lateT=True, ldata=False, tat=8, wbl2=False, pwo='', pall='', astag=0, e1st=False):
    a = Asm()
    ORDER = list(order)
    vlate = vpos == 9
    name = NAME + "_kernel"
    nstamp = [0]
    def stamp(on=True):
        if not stamps or not on:
            return
        r = 70 + 2 * nstamp[0]
        assert r + 1 <= 101
        nstamp[0] += 1
        a(f"{'s_memtime' if cyc else 's_memrealtime'} s[{r}:{r+1}]")
    lst = swave == 6
    cst = swave < 4 and not p2st and not e1st
    def store_stamps(n):
        a("s_waitcnt vmcnt(0) lgkmcnt(0)")
        a(f"s_cmp_lg_u32 s3, {swave}")
        a("s_cbranch_scc1 L_end")
        a("s_lshl_b32 s54, s2, 8")
        a(f"s_add_u32 s54, s54, {WS_STAMP}")
        a("v_mov_b32 v5, 0")
        a("s_mov_b64 exec, 1")
        for i in range(n):
            r = 70 + 2 * i
            a(f"v_mov_b32 v6, s{r}")
            a(f"v_mov_b32 v7, s{r+1}")
            a(f"buffer_store_dwordx2 v[6:7], v5, s[32:35], s54 offen offset:{8*i}")
            a("s_nop 1")

    ACC = 24; KF = 72; VT32 = 120; VT16 = 152
    QB = 56
    PA = 168
    HV = 184; KA = 185; VA = 186; TA_ = 187

    a('.amdgcn_target "amdgcn-amd-amdhsa--gfx950"')
    a(".text")
    kernel_begin(a, name)
    a("s_cmp_ge_u32 s2, 256")
    a("s_cbranch_scc1 L_end")
    stamp()
    a("s_load_dwordx16 s[36:51], s[0:1], 0")
    a("v_lshrrev_b32 v2, 6, v0")
    a("v_and_b32 v1, 63, v0")
    a("s_and_b32 s6, s2, 7")
    a("v_readfirstlane_b32 s3, v2")
    a("s_lshr_b32 s7, s2, 3")
    a("s_and_b32 s7, s7, 3")
    a("s_lshr_b32 s5, s2, 5")
    a("s_lshl_b32 s4, s6, 2")
    a("s_add_u32 s4, s4, s7")
    a("v_lshrrev_b32 v2, 4, v1")
    a("v_lshlrev_b32 v3, 4, v1")
    a("s_and_b32 s58, s3, 1")
    a("s_cmp_lt_u32 s3, 4")
    a("s_cbranch_scc1 L_compute")

    def att_setup():
        a("s_lshl_b32 s54, s5, 7")
        a("s_load_dword s52, s[50:51], s54")
        a("s_cmp_ge_u32 s3, 3")
        a("s_cselect_b32 s60, 1, 0")
        a("s_mul_i32 s54, s60, 3")
        a("s_sub_u32 s61, s3, s54")
        a("v_and_b32 v16, 15, v1")
        a("v_lshrrev_b32 v17, 1, v2")
        a("v_xor_b32 v17, v17, v16")
        a("v_lshlrev_b32 v17, 4, v17")
        a("v_lshl_add_u32 v17, v16, 8, v17")
        a("v_and_b32 v18, 1, v2")
        a("v_lshl_add_u32 v17, v18, 3, v17")
        a("s_mul_i32 s54, s60, 12288")
        a(f"s_add_u32 s54, s54, {KVB}")
        a(f"v_add_u32 v{KA}, s54, v17")
        a("v_bfe_u32 v16, v1, 2, 2")
        a("v_lshl_add_u32 v17, v2, 2, v16")
        a("v_and_b32 v16, 7, v17")
        a("v_lshlrev_b32 v17, 8, v17")
        a("v_lshl_add_u32 v17, v16, 5, v17")
        a("v_and_b32 v16, 3, v1")
        a("v_lshl_add_u32 v17, v16, 3, v17")
        a("s_add_u32 s54, s54, 24576")
        a(f"v_add_u32 v{VA}, s54, v17")
        a("s_lshl_b32 s54, s5, 3")
        a("s_add_u32 s54, s54, s6")
        a("s_lshl_b32 s55, s54, 7")
        a(f"s_add_u32 s68, s55, {WS_HELLO}")
        a("s_lshl_b32 s55, s54, 8")
        a(f"s_add_u32 s62, s55, {WS_FLAG1}")
        a("s_lshl_b32 s54, s60, 7")
        a("s_add_u32 s64, s62, s54")
        a("s_lshl_b32 s54, s5, 5")
        a("s_add_u32 s54, s54, s4")
        a("s_mul_i32 s54, s54, 24576")
        a("s_lshl_b32 s55, s3, 12")
        a("s_add_u32 s54, s54, s55")
        a(f"s_add_u32 s63, s54, {WS_O}")
        a("s_add_u32 s36, s7, s5")
        a("s_and_b32 s36, s36, 3")
        a("s_lshr_b32 s37, s5, 2")
        a(f"s_add_u32 s55, s55, {QB_LDS}")
        a("v_add_u32 v16, s55, v3")
        a("s_mul_i32 s54, s7, 3")
        a("s_add_u32 s54, s54, s61")
        a("s_lshl_b32 s54, s54, 2")
        a("v_mov_b32 v17, s54")
        a("s_lshl_b32 s54, s5, 2")
        a("s_add_u32 s54, s54, s36")
        a(f"s_mul_i32 s54, s54, {8*PSZ}")
        a(f"s_add_u32 s43, s54, {WS_PART}")
        if not lateT: tag_setup()
    def tag_setup():
        a("s_waitcnt lgkmcnt(0)")
        a("s_mul_i32 s52, s52, 0x41C64E6D")
        a("s_add_u32 s52, s52, 0x3039")
        a("v_mov_b32 v18, s52")
        if local:
            a("s_getreg_b32 s54, hwreg(HW_REG_XCC_ID, 0, 4)")
            a("s_lshl_b32 s54, s54, 8")
            a("s_or_b32 s54, s54, 0x5a")
            a("s_xor_b32 s67, s52, s54")
    def kvreads():
        L = []
        for x in range(8):
            t = TA_ + (x & 1)
            L.append(f"v_xor_b32 v{t}, {x*32}, v{KA}")
            for kt in range(3):
                r = KF + (kt * 4 + (x >> 1)) * 4 + (x & 1) * 2
                L.append(f"ds_read_b64 v[{r}:{r+1}], v{t} offset:{kt*4096}")
        for t8 in range(8):
            t = TA_ + (t8 & 1)
            L.append(f"v_xor_b32 v{t}, {t8*32}, v{VA}")
            for kt in range(3):
                r = (VT32 + 4 * t8 + 2 * kt) if kt < 2 else (VT16 + 2 * t8)
                L.append(f"ds_read_b64_tr_b16 v[{r}:{r+1}], v{t} offset:{kt*4096}")
        return L
    def hello_load():
        return ["v_and_b32 v20, 3, v1", "v_lshlrev_b32 v20, 2, v20",
                f"buffer_load_dword v{HV}, v20, s[32:35], s68 offen sc1"]
    KVL = kvreads()
    sched = {c: [] for c in range(10)}
    groups = [(kvpos + 1, KVL[4*k:4*k+4]) for k in range(8)]
    if not vlate:
        groups += [(vpos + 1, KVL[32+4*k:32+4*k+4]) for k in range(8)]
    for start, grp in sorted(groups, key=lambda t: -t[0]):
        best = min(range(start, kvlast + 1), key=lambda c: (len(sched[c]), c))
        if not nokvr: sched[best] += grp

    vm = VM(a)
    a(f"s_setprio {lprio}")
    a("s_and_b32 s59, s3, 3")
    if fronts:
        a("s_add_u32 s53, s7, s5")
        if fronts == 4:
            a("s_and_b32 s53, s53, 3")
            a("s_mul_i32 s53, s53, 5")
            a("s_add_u32 s53, s53, 1")
            a("s_lshr_b32 s53, s53, 1")
        elif fronts == 2:
            a("s_and_b32 s53, s53, 1")
            a("s_mul_i32 s53, s53, 5")
        elif fronts == 3:
            a("s_mul_i32 s54, s53, 43")
            a("s_lshr_b32 s54, s54, 7")
            a("s_mul_i32 s54, s54, 3")
            a("s_sub_u32 s53, s53, s54")
            a("s_mul_i32 s53, s53, 7")
            a("s_lshr_b32 s53, s53, 1")
        elif fronts == 1:
            a("s_mov_b32 s53, 0")
        a("s_add_u32 s53, s53, s6")
    elif oldskew:
        if skewrev:
            a("s_add_u32 s53, s7, 2")
            a("s_and_b32 s53, s53, 3")
            a("s_mul_i32 s53, s53, 3")
        else:
            a("s_mul_i32 s53, s7, 3")
        a("s_add_u32 s53, s53, s5")
        a("s_add_u32 s53, s53, s6")
    else:
        a("s_lshr_b32 s53, s5, 2")
        a("s_add_u32 s53, s53, s5")
        a("s_add_u32 s53, s53, s6")
        a("s_add_u32 s69, s53, 4")
        a("s_mul_i32 s54, s7, 5")
        a("s_lshr_b32 s54, s54, 1")
        a("s_add_u32 s53, s53, s54")
    for _ in range(2):
        a("s_cmp_ge_u32 s53, 10")
        a("s_cselect_b32 s54, 10, 0")
        a("s_sub_u32 s53, s53, s54")
    a("v_lshrrev_b32 v20, 3, v1")
    a("v_and_b32 v21, 7, v1")
    a("v_xor_b32 v21, v21, v2")
    a("s_mul_i32 s54, s5, 96")
    a("s_mul_i32 s55, s59, 24")
    a("s_add_u32 s54, s54, s55")
    a("v_add_u32 v20, s54, v20")
    a("v_mul_u32_u24 v20, 1280, v20")
    a("s_lshl_b32 s55, s58, 2")
    a("v_xor_b32 v22, s55, v21")
    a("v_xor_b32 v23, 4, v22")
    a("v_lshl_add_u32 v4, v22, 4, v20")
    a("v_lshl_add_u32 v5, v23, 4, v20")
    a(f"v_add_u32 v5, {10240-1024}, v5")
    a(f"v_add_u32 v6, {2*(10240-1024)}, v4")
    a("v_and_b32 v20, 15, v1")
    a("v_lshlrev_b32 v21, 1, v2")
    a("v_xor_b32 v20, v20, v21")
    a("s_lshl_b32 s54, s59, 4")
    a("v_add_u32 v21, s54, v2")
    a("v_lshlrev_b32 v21, 13, v21")
    a("s_lshl_b32 s54, s4, 8")
    a("v_add_u32 v21, s54, v21")
    a("v_lshl_add_u32 v7, v20, 4, v21")
    a(f"v_add_u32 v8, {32768-1024}, v7")
    a("v_xor_b32 v20, 8, v20")
    a("v_lshl_add_u32 v9, v20, 4, v21")
    a(f"v_add_u32 v9, {2*(32768-1024)}, v9")
    a(f"v_add_u32 v10, {32768-1024}, v9")
    a("s_mul_i32 s56, s59, 3072")
    a("s_lshl_b32 s57, s59, 12")
    a(f"s_add_u32 s57, s57, {XB}")
    a("s_waitcnt lgkmcnt(0)")
    srd(a, 8, 36, X_BYTES)
    srd(a, 20, 42, WQ_BYTES)

    def issue_chunk(c):
        if noload and c >= 2:
            vm.issue(("c", c), 0); vm.ops.append(("c", c)); a("buffer_load_dword v29, v4, s[8:11], 0 offen"); return
        sl = SLOT[c % 3]
        a("s_lshl_b32 s54, s53, 7")
        a("s_lshl_b32 s55, s53, 19")
        def X():
            a(f"s_add_u32 m0, s56, {sl}")
            a("s_nop 0")
            for i in range(3):
                a(f"buffer_load_dwordx4 v{4+i}, s[8:11], s54 offen offset:{i*1024}{pall} lds")
        def W():
            a(f"s_add_u32 m0, s57, {sl}")
            a("s_add_u32 s53, s53, 1")
            for i in range(4):
                a(f"buffer_load_dwordx4 v{7+i}, s[20:23], s55 offen offset:{i*1024}{pall} lds")
        if wqfirst: W(); X()
        else: X(); W()
        vm.issue(("c", c), 7)
        a("s_cmp_ge_u32 s53, 10")
        a("s_cselect_b32 s53, 0, s53")
    def issue_kv(which):
        sr = "s[12:15]" if which == 0 else "s[16:19]"
        for i in range(6):
            if i % 4 == 0:
                a(f"s_add_u32 m0, s65, {KVB + which*24576 + i*1024}")
                a(f"s_add_u32 s54, s66, {i*1024}")
            vo = f"v{11 + (i & 3)}" if which == 0 else f"v{[15, 19][i & 1]}"
            a(f"buffer_load_dwordx4 {vo}, {sr}, s54 offen offset:{(i%4)*1024}{pall} lds")
        vm.issue(("kv", which), 6)
    stamp(lst and st0)
    issue_chunk(0)
    stamp(lst and st0)
    if st0:
        for n in (6, 4, 3, 0):
            a(f"s_waitcnt vmcnt({n})")
            stamp(lst)
    issue_chunk(1)
    stamp(lst and st0)
    if xtouch:
        a("s_lshr_b32 s54, s7, 1")
        a("s_mul_i32 s54, s54, 5")
        a("s_add_u32 s69, s69, s54")
        for _ in range(2):
            a("s_cmp_ge_u32 s69, 10")
            a("s_cselect_b32 s54, 10, 0")
            a("s_sub_u32 s69, s69, s54")
        a("s_lshl_b32 s69, s69, 7")
        a("s_and_b32 s54, s7, 1")
        a("s_mul_i32 s54, s54, 48")
        a("s_mul_i32 s55, s59, 12")
        a("s_add_u32 s54, s54, s55")
        a("s_mul_i32 s55, s5, 96")
        a("s_add_u32 s54, s54, s55")
        a("v_min_u32 v20, 11, v1")
        a("v_add_u32 v20, s54, v20")
        a("v_mul_u32_u24 v20, 1280, v20")
        a("buffer_load_dword v29, v20, s[8:11], s69 offen")
        vm.issue("xt")
    srd(a, 12, 38, KV_BYTES)
    srd(a, 16, 40, KV_BYTES)
    srd(a, 32, 50, WS_BYTES)
    srd(a, 24, 44, WO_BYTES)
    srd(a, 28, 46, OUT_BYTES)
    a("s_lshr_b32 s55, s59, 1")
    a("s_lshl_b32 s54, s5, 1")
    a("s_add_u32 s54, s54, s55")
    a("s_lshl_b32 s54, s54, 5")
    a("s_add_u32 s54, s54, s4")
    a("s_mul_i32 s54, s54, 12288")
    a("s_mul_i32 s55, s58, 6144")
    a("s_add_u32 s66, s54, s55")
    a("s_mul_i32 s65, s59, 6144")
    a("v_lshlrev_b32 v20, 4, v2")
    a("v_xor_b32 v20, v3, v20")
    for i in range(4):
        a(f"s_lshl_b32 s54, s58, 1")
        a(f"s_add_u32 s54, s54, {i}")
        a("s_and_b32 s54, s54, 3")
        a("s_lshl_b32 s54, s54, 6")
        a(f"v_xor_b32 v{11+i}, s54, v20")
    a("v_lshlrev_b32 v20, 5, v2")
    a("v_xor_b32 v15, v3, v20")
    a("v_xor_b32 v19, 128, v15")
    att_setup()
    WOV = 24
    for i in range(5):
        a(f"v_add_u32 v20, {64*i}, v1")
        a("v_mul_u32_u24 v21, 52429, v20")
        a("v_lshrrev_b32 v21, 20, v21")
        a("v_mul_u32_u24 v23, 20, v21")
        a("v_sub_u32 v20, v20, v23")
        a("v_bfe_u32 v23, v21, 2, 1")
        a("v_lshlrev_b32 v23, 1, v23")
        a("v_xor_b32 v20, v23, v20")
        a("v_mul_u32_u24 v21, 1280, v21")
        a(f"v_lshl_add_u32 v{WOV+i}, v20, 4, v21")
        if 0 < i < 4:
            a(f"v_subrev_u32 v{WOV+i}, {1024*i}, v{WOV+i}")
    a("s_mul_i32 s40, s6, 655360")
    a("s_mul_i32 s54, s36, 320")
    a("s_add_u32 s40, s40, s54")
    a("s_mul_i32 s54, s59, 20480")
    a("s_add_u32 s38, s40, s54")
    a("s_mul_i32 s39, s59, 5120")
    a("s_mul_i32 s54, s58, 20480")
    a("s_add_u32 s40, s40, s54")
    a("s_mul_i32 s41, s58, 5120")
    if ldata:
        a("v_lshlrev_b32 v29, 7, v1")
        a("v_and_b32 v30, 31, v1")
        a("v_lshlrev_b32 v30, 7, v30")
        a("v_add_u32 v30, 8192, v30")
        a("s_lshl_b32 s54, s3, 12")
        a("s_sub_u32 s44, s63, s54")
        a("s_mul_i32 s54, s58, 12288")
        a("s_add_u32 s44, s44, s54")
    for r in (0, 1, 2, 11, 13, 14):
        a(f"v_mov_b32 v{PA+r}, 0")
    a("s_lshl_b32 s54, s2, 2")
    a("s_add_u32 s54, s54, s59")
    a(f"s_lshl_b32 s54, s54, {10 if f2sep else 7}")
    a(f"s_add_u32 s69, s54, {WS_FLAG2}")
    a("s_load_dword s42, s[50:51], s69")
    a("s_add_u32 s54, s69, 64")
    a("s_load_dword s42, s[50:51], s54")

    def issue_wo(m, thr=None, four=False, part=None):
        k = ORDER.index(m)
        lskip = a.label("L_wskip")
        if part == "b":
            a("s_cmp_eq_u32 s58, 0")
            a(f"s_cbranch_scc1 {lskip}")
        a(f"s_add_u32 s54, s7, {k>>1}")
        a("s_and_b32 s54, s54, 3")
        a("s_lshl_b32 s54, s54, 1")
        a(f"s_xor_b32 s55, s37, {k&1}")
        a("s_add_u32 s54, s54, s55")
        a("s_mul_i32 s54, s54, 81920")
        a(f"s_add_u32 s54, s54, {'s38' if four else 's40'}")
        lb = "s39" if four else "s41"
        for blk in range(1 if four else 2):
            if part == "b" and blk == 0:
                continue
            a(f"s_add_u32 m0, {lb}, {m*WOCH + blk*10240}")
            if blk: a("s_add_u32 s54, s54, 40960")
            else: a("s_nop 0")
            for i in range(5):
                if part == "b" and i == 0:
                    continue
                if part == "a" and blk == 1 and i == 1:
                    a("s_cmp_lg_u32 s58, 0")
                    a(f"s_cbranch_scc1 {lskip}")
                if thr is not None:
                    a(f"s_waitcnt vmcnt({thr-1})")
                if i == 4:
                    a(f"s_add_u32 m0, {lb}, {m*WOCH + blk*10240 + 4096}")
                    a("s_nop 0")
                    a(f"buffer_load_dwordx4 v{WOV+i}, s[24:27], s54 offen{pwo} lds")
                else:
                    a(f"buffer_load_dwordx4 v{WOV+i}, s[24:27], s54 offen offset:{i*1024}{pwo} lds")
        a(f"{lskip}:")
        vm.issue(("wo", m), 5 if four else (10 if part is None else (6 if part == "a" else 0)))
    def extras(c):
        if c == kvpos: issue_kv(0)
        if c == vpos: issue_kv(1)
        if c == wo7pos: issue_wo(7, four=True)
    extras(1)
    def ld_kv(c):
        part = sched[c]
        if not part: return
        l = a.label("L_nokv")
        a("s_cmp_ge_u32 s3, 6")
        a(f"s_cbranch_scc1 {l}")
        for r in part: a(r)
        a(f"{l}:")
    for c in range(8):
        vm.wait(("c", c))
        a("s_barrier")
        stamp(lst and (allst or c % 2 == 0) and not (st0 and c > 0))
        issue_chunk(c + 2)
        extras(c + 2)
        if c == 1 and lateT: tag_setup()
        ld_kv(c)
    vm.wait(("c", 8))
    a("s_cmp_ge_u32 s3, 6")
    a("s_cbranch_scc1 L_wo_loader")
    after9 = len(vm.ops) - 1 - max(i for i, t in enumerate(vm.ops) if t == ("c", 9))
    a("s_barrier")
    if local:
        for l in hello_load(): a(l)
    for r in sched[8]: a(r)
    a(f"s_waitcnt vmcnt({after9 + (1 if local else 0)}) lgkmcnt(0)")
    a("s_barrier")
    for r in sched[9]: a(r)
    a("s_waitcnt vmcnt(0) lgkmcnt(0)")
    a("s_branch L_attn")
    a("L_wo_loader:")
    done = [] if wo7pos is None else [7]
    a("s_barrier")
    stamp(lst)
    def touch():
        a("buffer_load_dword v31, v29, s[32:35], s44 offen sc1")
        a("buffer_load_dword v32, v30, s[32:35], s44 offen sc1")
        vm.issue("touch", 2)
    if ldata and tat == 7: touch()
    for m in at8: issue_wo(m); done.append(m)
    if ldata and tat == 8: touch()
    vm.wait(("c", 9))
    a("s_barrier")
    stamp(lst)
    a(f"s_setprio {lprio2}")
    if ldata and tat == 9: touch()
    for m in at9: issue_wo(m); done.append(m)
    vm.wait(("kv", 1))
    a("s_barrier")
    for m in atq:
        assert m != 2
        issue_wo(m, throttle, part=("a" if m == 1 else None)); done.append(m)
    nearly = (bzks + 1) // 2
    for m in ORDER[:nearly]:
        assert m in done
        vm.wait(("wo", m))
    stamp(lst)
    a("s_barrier")
    a("s_barrier")
    if 1 in atq:
        issue_wo(1, None, part="b")
    if bz2 is not None:
        for m in seg1: issue_wo(m, throttle); done.append(m)
        for m in ORDER[:(bz2 + 1) // 2]:
            assert m in done
            vm.wait(("wo", m))
        a("s_barrier")
    for m in ORDER:
        if m not in done:
            issue_wo(m, throttle)
    a("s_waitcnt vmcnt(0)")
    stamp(lst)

    a("L_reducer:")
    a("s_barrier")
    if wbl2:
        a("s_lshr_b32 s54, s2, 3")
        a("s_lshl_b32 s54, s54, 3")
        a("s_add_u32 s54, s54, s3")
        a("s_cmp_lg_u32 s54, 4")
        a("s_cbranch_scc1 L_nowb")
        a("buffer_wbl2 sc1")
        a("L_nowb:")
    a("s_setprio 0")
    a("v_and_b32 v22, 7, v1")
    a(f"v_lshlrev_b32 v22, {7 if f2sep else 2}, v22")
    a("s_waitcnt lgkmcnt(0)")
    a("s_lshr_b32 s60, s6, 2")
    a("s_and_b32 s61, s6, 3")
    a("s_lshr_b32 s40, s59, 1")
    a("v_bfe_u32 v7, v1, 2, 2")
    a("v_and_b32 v8, 3, v1")
    a("s_lshl_b32 s54, s58, 2")
    a("v_add_u32 v9, s54, v2")
    a("v_lshlrev_b32 v4, 10, v9")
    a("v_lshl_add_u32 v4, v8, 6, v4")
    a("v_lshl_add_u32 v4, v7, 4, v4")
    a("s_lshl_b32 s54, s60, 1")
    a("s_add_u32 s54, s54, s40")
    a("s_lshl_b32 s54, s54, 13")
    a("s_lshl_b32 s55, s61, 8")
    a("s_add_u32 s54, s54, s55")
    a("s_add_u32 s43, s43, s54")
    a("v_lshlrev_b32 v9, 1, v9")
    a("v_add_u32 v10, 1, v9")
    for (f, d) in ((9, 5), (10, 6)):
        a(f"v_mul_u32_u24 v13, 43, v{f}")
        a("v_lshrrev_b32 v13, 7, v13")
        a("v_mul_u32_u24 v14, 3, v13")
        a(f"v_sub_u32 v14, v{f}, v14")
        a("v_lshl_add_u32 v14, v14, 4, v7")
        a("v_mul_u32_u24 v14, 1280, v14")
        a(f"v_lshl_add_u32 v{d}, v13, 5, v14")
        a(f"v_lshl_add_u32 v{d}, v8, 3, v{d}")
    a("v_cmp_gt_u32 s[38:39], 15, v10")
    a("s_mul_i32 s54, s5, 96")
    a("s_mul_i32 s55, s60, 48")
    a("s_add_u32 s54, s54, s55")
    a("s_lshl_b32 s55, s61, 2")
    a("s_add_u32 s54, s54, s55")
    a("s_mul_i32 s54, s54, 1280")
    a("s_mul_i32 s55, s36, 320")
    a("s_add_u32 s54, s54, s55")
    a("s_mul_i32 s55, s40, 160")
    a("s_add_u32 s60, s54, s55")
    for src in range(8):
        a(f"s_add_u32 s{8+src}, s43, {src*PSZ}")
    a("s_mov_b32 s42, 0xffff0000")
    a("s_mov_b32 s53, 0")
    a("s_mov_b32 s61, 0")
    a("s_barrier")
    stamp(lst)
    def unpack(maskreg):
        for src in range(8):
            l = a.label("L_nu")
            a(f"s_bitcmp1_b32 {maskreg}, {src}")
            a(f"s_cbranch_scc0 {l}")
            r = 24 + 4 * src; b = 64 + 8 * src
            for k in range(4):
                a(f"v_lshlrev_b32 v{b+2*k}, 16, v{r+k}")
                a(f"v_and_b32 v{b+1+2*k}, s42, v{r+k}")
            a(f"{l}:")
    a("s_mov_b32 s41, 0")
    a("L_poll2:")
    if f2sleep: a(f"s_sleep {f2sleep}")
    a(f"buffer_load_dword v23, v22, s[32:35], s69 offen {f2poll}")
    a("s_add_u32 s53, s53, 1")
    a("s_cmp_ge_u32 s53, 0x100000")
    a("s_cbranch_scc1 L_got2")
    a("s_waitcnt vmcnt(0)")
    a("v_cmp_eq_u32 vcc, s52, v23")
    a("s_and_b32 s54, vcc_lo, 0xff")
    a("s_andn2_b32 s54, s54, s61")
    a("s_cbranch_scc0 L_poll2")
    a("s_or_b32 s61, s61, s54")
    for src in range(8):
        l = a.label("L_ns")
        a(f"s_bitcmp1_b32 s54, {src}")
        a(f"s_cbranch_scc0 {l}")
        r = 24 + 4 * src
        a(f"buffer_load_dwordx4 v[{r}:{r+3}], v4, s[32:35], s{8+src} offen sc1")
        a(f"{l}:")
    a("s_mov_b32 s55, s41")
    a("s_mov_b32 s41, s54")
    a("L_unp:")
    unpack("s55")
    a("s_cmp_lg_u32 s61, 0xff")
    a("s_cbranch_scc1 L_poll2")
    a("s_cmp_eq_u32 s41, 0")
    a("s_cbranch_scc1 L_got2")
    stamp(lst)
    a("s_waitcnt vmcnt(0)")
    a("s_mov_b32 s55, s41")
    a("s_mov_b32 s41, 0")
    a("s_branch L_unp")
    a("L_got2:")
    for lvl in (32, 16, 8):
        for r in range(0, lvl, 2):
            a(f"v_pk_add_f32 v[{64+r}:{65+r}], v[{64+r}:{65+r}], v[{64+lvl+r}:{65+lvl+r}]")
    for k in range(4):
        a(f"v_cvt_pk_bf16_f32 v{80+k}, v{64+2*k}, v{65+2*k}")
    a(f"buffer_store_dwordx2 v[80:81], v5, s[28:31], s60 offen{outfl}")
    a("s_mov_b64 exec, s[38:39]")
    a(f"buffer_store_dwordx2 v[82:83], v6, s[28:31], s60 offen{outfl}")
    a("s_mov_b64 exec, -1")
    a("s_and_b32 s54, s2, 31")
    a("s_or_b32 s54, s54, s59")
    a("s_cmp_lg_u32 s54, 0")
    a("s_cbranch_scc1 L_noep")
    a("s_lshl_b32 s54, s5, 7")
    a("v_mov_b32 v20, 0")
    a("s_mov_b64 exec, 1")
    a("buffer_store_dword v18, v20, s[32:35], s54 offen sc1")
    a("s_mov_b64 exec, -1")
    a("L_noep:")
    if stamps and lst:
        a("s_waitcnt vmcnt(0)")
        stamp()
        store_stamps(nstamp[0])
    a("s_endpgm")
    nl = nstamp[0]
    if stamps:
        nstamp[0] = 1

    a("L_compute:")
    vm = VM(a)
    e = Emit(a)
    a("s_lshr_b32 s59, s3, 1")
    a("v_and_b32 v20, 15, v1")
    a("v_lshrrev_b32 v21, 1, v20")
    a("v_xor_b32 v21, v21, v2")
    a("s_mul_i32 s54, s59, 48")
    a("v_add_u32 v20, s54, v20")
    a("v_lshlrev_b32 v20, 7, v20")
    a("v_lshl_add_u32 v4, v21, 4, v20")
    a("v_xor_b32 v5, 64, v4")
    a(f"v_add_u32 v6, {HI}, v4")
    a(f"v_add_u32 v7, {HI}, v5")
    a("v_bfe_u32 v20, v1, 2, 2")
    a("v_and_b32 v21, 1, v2")
    a("v_lshl_or_b32 v21, v21, 2, v20")
    a("s_lshl_b32 s54, s58, 2")
    a("v_xor_b32 v21, s54, v21")
    a("v_lshl_add_u32 v23, v2, 3, v20")
    a("v_lshlrev_b32 v23, 8, v23")
    a("v_and_b32 v22, 3, v1")
    a("v_lshl_add_u32 v23, v22, 3, v23")
    a(f"v_add_u32 v23, {XB}, v23")
    for T in range(4):
        a(f"v_xor_b32 v22, {T}, v21")
        a(f"v_lshl_add_u32 v{8+T}, v22, 5, v23")
        a(f"v_add_u32 v{12+T}, {HI}, v{8+T}")
    if ptouch:
        a("s_lshl_b32 s8, s5, 6")
        a("s_add_u32 s8, s8, s4")
        a("s_mul_i32 s8, s8, 12288")
        a("s_add_u32 s9, s8, 393216")
        a("s_mul_i32 s10, s6, 655360")
        a("s_add_u32 s11, s10, 655356")
        a("s_lshl_b32 s12, s5, 5")
        a("s_lshl_b32 s13, s6, 2")
        a("s_add_u32 s12, s12, s13")
        a("s_mul_i32 s12, s12, 24576")
        a(f"s_add_u32 s12, s12, {WS_O}")
        a("s_add_u32 s13, s12, 98300")
        a("s_add_u32 s14, s7, s5")
        a("s_and_b32 s14, s14, 3")
        a("s_lshl_b32 s15, s5, 2")
        a("s_add_u32 s14, s14, s15")
        a(f"s_mul_i32 s14, s14, {8*PSZ}")
        a(f"s_add_u32 s14, s14, {WS_PART}")
    a("s_waitcnt lgkmcnt(0)")
    if ptouch:
        pages = [(36, "0"), (42, "0"), (42, "0x200000"), (42, "0x400000"), (42, "0x4ffffc"), (38, "s8"), (38, "s9"), (40, "s8"), (40, "s9"),
                 (44, "s10"), (44, "s11"), (50, "0"), (50, "s12"), (50, "s13"), (50, "s14"), (46, "0")]
        pages = pages[:ptouch]
        a("s_cmp_lg_u32 s3, 0")
        a("s_cbranch_scc1 L_nopt")
        a("v_mov_b32 v20, s36")
        a("v_mov_b32 v21, s37")
        for k, (b, off) in enumerate(pages):
            a(f"s_add_u32 s54, s{b}, {off}")
            a(f"s_addc_u32 s55, s{b+1}, 0")
            a(f"v_writelane_b32 v20, s54, {k}")
            a(f"v_writelane_b32 v21, s55, {k}")
        a("global_load_dword v22, v[20:21], off")
        a("L_nopt:")
    srd(a, 32, 50, WS_BYTES)
    srd(a, 28, 46, OUT_BYTES)
    att_setup()
    a("v_mov_b32 v21, 0")
    a("s_lshl_b32 s54, s59, 7")
    a("s_add_u32 s62, s62, s54")
    a("s_load_dword s42, s[50:51], s62")
    a("s_add_u32 s54, s62, 64")
    a("s_load_dword s42, s[50:51], s54")
    def hello_store():
        if local:
            a("s_cmp_lg_u32 s3, 0")
            a("s_cbranch_scc1 L_nohello")
            a("s_lshl_b32 s54, s7, 2")
            a("v_mov_b32 v20, s54")
            a("v_mov_b32 v21, s67")
            a("s_mov_b64 exec, 1")
            a("buffer_store_dword v21, v20, s[32:35], s68 offen sc1")
            a("s_mov_b64 exec, -1")
            a("L_nohello:")
    if not lateT: hello_store()
    a("s_lshl_b32 s54, s5, 5")
    a("s_lshl_b32 s55, s6, 2")
    a("s_add_u32 s54, s54, s55")
    a("s_mul_i32 s54, s54, 24576")
    a("s_mul_i32 s55, s59, 12288")
    a("s_add_u32 s54, s54, s55")
    a(f"s_add_u32 s54, s54, {WS_O}")
    a(f"v_add_u32 v{PA}, s54, v3")
    a(f"v_add_u32 v{PA+1}, 4096, v{PA}")
    a(f"v_add_u32 v{PA+2}, 8192, v{PA}")
    a("v_bfe_u32 v19, v1, 2, 2")
    a("v_lshl_add_u32 v19, v2, 2, v19")
    a("v_mul_u32_u24 v19, 320, v19")
    a("v_and_b32 v20, 3, v1")
    a("v_lshl_add_u32 v19, v20, 3, v19")
    a("s_mul_i32 s54, s58, 160")
    a("v_add_u32 v19, s54, v19")
    a("v_and_b32 v20, 1, v2")
    a("v_lshlrev_b32 v20, 5, v20")
    a("v_add_u32 v21, v19, v20")
    a("v_sub_u32 v20, v19, v20")
    a("s_cmp_eq_u32 s58, 0")
    a("s_cselect_b64 vcc, -1, 0")
    a(f"v_cndmask_b32 v{PA+3}, v20, v21, vcc")
    a(f"v_cndmask_b32 v{PA+4}, v21, v20, vcc")
    a(f"v_add_u32 v{PA+5}, {3*WOCH}, v{PA+3}")
    a(f"v_add_u32 v{PA+6}, {3*WOCH}, v{PA+4}")
    a(f"v_add_u32 v{PA+7}, {6*WOCH}, v{PA+3}")
    a(f"v_add_u32 v{PA+8}, {6*WOCH}, v{PA+4}")
    a("s_mul_i32 s54, s59, 12288")
    a(f"s_add_u32 s54, s54, {QB_LDS}")
    a("s_lshl_b32 s55, s37, 11")
    a("s_add_u32 s55, s54, s55")
    a(f"v_add_u32 v{PA+9}, s55, v3")
    a(f"v_xor_b32 v{PA+10}, 2048, v{PA+9}")
    a(f"v_min_u32 v{PA+11}, 11, v1")
    a(f"v_lshlrev_b32 v{PA+11}, 2, v{PA+11}")
    a("s_lshl_b32 s55, s58, 11")
    a("s_add_u32 s54, s54, s55")
    a(f"v_add_u32 v{PA+12}, s54, v3")
    a("v_bfe_u32 v19, v1, 2, 2")
    a("v_lshl_add_u32 v19, v19, 2, v2")
    a("v_and_b32 v20, 3, v1")
    a("v_lshlrev_b32 v20, 4, v20")
    a(f"v_lshl_add_u32 v{PA+13}, v19, 6, v20")
    a("v_lshrrev_b32 v19, 1, v1")
    a("v_and_b32 v20, 1, v1")
    a(f"v_lshlrev_b32 v20, {10 if f2sep else 7}, v20")
    a(f"v_lshl_add_u32 v{PA+14}, v19, {12 if f2sep else 9}, v20")
    a(f"s_mul_i32 s54, s6, {PSZ}")
    a("s_add_u32 s65, s43, s54")
    a("s_lshl_b32 s54, s3, 13")
    a("s_add_u32 s65, s65, s54")
    a("s_add_u32 s66, s65, 4096")
    a("s_andn2_b32 s55, s2, 7")
    a("s_lshl_b32 s54, s59, 2")
    a("s_add_u32 s55, s55, s54")
    a("s_lshl_b32 s55, s55, 2")
    a("s_lshl_b32 s54, s58, 1")
    a("s_add_u32 s55, s55, s54")
    a(f"s_lshl_b32 s55, s55, {10 if f2sep else 7}")
    a(f"s_lshl_b32 s54, s6, {7 if f2sep else 2}")
    a("s_add_u32 s55, s55, s54")
    a(f"s_add_u32 s69, s55, {WS_FLAG2}")
    for hh in range(1, 4):
        a(f"s_add_u32 s54, s7, {hh}")
        a("s_and_b32 s54, s54, 3")
        a("s_mul_i32 s54, s54, 3")
        a(f"s_lshl_b32 s{16+hh}, 7, s54")
    for k in range(2, 8):
        a(f"s_add_u32 s55, s7, {k>>1}")
        a("s_and_b32 s55, s55, 3")
        a("s_mul_i32 s55, s55, 24576")
        a(f"s_xor_b32 s54, s37, {k&1}")
        a("s_lshl_b32 s54, s54, 11")
        a(f"s_add_u32 s{6+k}, s54, s55")

    def fa(s, T): return s * 28 + T * 4
    def fb(s, qt): return s * 28 + 16 + qt * 4
    def reads(c, s):
        hi = (c % 3) == 1
        off0 = 0 if hi else SLOT[c % 3]
        L = []
        def A(T):
            ad = (12 if hi else 8) + T
            for hf in range(2):
                r = fa(s, T) + 2 * hf
                L.append(f"ds_read_b64_tr_b16 a[{r}:{r+1}], v{ad} offset:{off0 + (32*s + 4*hf)*256}")
        A(0)
        for qt in range(3):
            ad = (6 if hi else 4) + s
            r = fb(s, qt)
            L.append(f"ds_read_b128 a[{r}:{r+3}], v{ad} offset:{off0 + qt*2048}")
        for T in range(1, 4): A(T)
        return L
    def mfmas(c, s):
        L = []
        for T in range(4):
            for qt in range(3):
                d = ACC + (T * 3 + qt) * 4
                A = fa(s, T); B = fb(s, qt)
                C = "0" if (c == 0 and s == 0) else f"v[{d}:{d+3}]"
                L.append(f"v_mfma_f32_16x16x32_bf16 v[{d}:{d+3}], a[{A}:{A+3}], a[{B}:{B+3}], {C}")
        return L
    def dense(M, R, X=(), per=per):
        R = list(R); X = list(X)
        for i, m in enumerate(M):
            e(m)
            for _ in range(per):
                if R: e(R.pop(0))
                elif X: e(X.pop(0))
        for x in R + X: e(x)
    for c in range(10):
        a("s_barrier")
        part = sched[c]
        hp = (len(part) // 8) * 4
        X0 = part[:hp]; X1 = part[hp:]
        if c == 8 and local:
            X0 = hello_load() + X0
        if nocomp:
            for x in X0 + X1: e(x)
        elif c == 0:
            for r in reads(0, 0): e(r)
            dense(mfmas(c, 0), reads(c, 1), X1)
        else:
            dense(mfmas(c - 1, 1), reads(c, 0), X0)
            if c < 9:
                dense(mfmas(c, 0), reads(c, 1), X1)
        if c < 9:
            e.drain()
        if c == 0 and lateT:
            tag_setup()
            hello_store()
    stamp(cst)
    def qcvt(s, qt):
        A0 = ACC + ((2 * s) * 3 + qt) * 4
        B0 = ACC + ((2 * s + 1) * 3 + qt) * 4
        return [f"v_cvt_pk_bf16_f32 v{A0}, v{A0}, v{A0+1}",
                f"v_cvt_pk_bf16_f32 v{A0+1}, v{A0+2}, v{A0+3}",
                f"v_cvt_pk_bf16_f32 v{A0+2}, v{B0}, v{B0+1}",
                f"v_cvt_pk_bf16_f32 v{A0+3}, v{B0+2}, v{B0+3}",
                f"ds_write_b128 v{PA+12}, v[{A0}:{A0+3}] offset:{qt*4096 + s*1024}"]
    M0 = mfmas(9, 0); M1 = mfmas(9, 1)
    seq = []
    for qt in range(3):
        seq += [(M0[0 * 3 + qt], None), (M0[1 * 3 + qt], None)]
    for qt in range(3):
        seq += [(M1[0 * 3 + qt], None), (M1[1 * 3 + qt], (0, qt))]
    for qt in range(3):
        seq += [(M0[2 * 3 + qt], None), (M0[3 * 3 + qt], None), (M1[2 * 3 + qt], None), (M1[3 * 3 + qt], (1, qt))]
    R = reads(9, 1)
    pend = []
    def tick():
        for p_ in pend: p_[0] += 1
    def filler(maxn):
        n = 0
        while n < maxn:
            if R:
                e(R.pop(0)); tick(); n += 1
            elif pend and pend[0][0] >= 8:
                e(pend[0][1].pop(0)); tick(); n += 1
                if not pend[0][1]: pend.pop(0)
            else:
                break
    for m, comp in seq:
        e(m); tick()
        if comp: pend.append([0, qcvt(*comp)])
        filler(2)
    while pend:
        if pend[0][0] < 8:
            k = 8 - pend[0][0]
            a(f"s_nop {k-1}")
            for p_ in pend: p_[0] += k
        filler(5)
    e.drain()

    a("L_attn:")
    a(f"s_setprio {aprio}")
    if astag:
        a(f"s_cmp_{'lt' if astag == 1 else 'ge'}_u32 s3, 4")
        a("s_cbranch_scc0 L_nostag")
        a("s_setprio 3")
        a("L_nostag:")
    a("s_barrier")
    stamp(cst or e1st)
    for s in range(4):
        e(f"ds_read_b128 v[{QB+4*s}:{QB+4*s+3}], v16 offset:{s*1024}")
    SA = 24; PF = 36; LS = 44; ONE = 48; MX = 52; TM = 53; OA = 72; OPK = 104
    VL = KVL[32:] if vlate else []
    for r in range(4):
        a(f"v_mov_b32 v{ONE+r}, 0x3f803f80")
    cexp = math.log2(math.e) / math.sqrt(128.0)
    cbits = struct.unpack("<I", struct.pack("<f", cexp))[0]
    a(f"s_mov_b32 s14, {cbits:#x}")
    for s in range(4):
        for kt in range(3):
            d = SA + 4 * kt
            A = KF + (kt * 4 + s) * 4
            C = "0" if s == 0 else f"v[{d}:{d+3}]"
            e(f"v_mfma_f32_16x16x32_bf16 v[{d}:{d+3}], v[{A}:{A+3}], v[{QB+4*s}:{QB+4*s+3}], {C}")
            for _ in range(3):
                if VL: e(VL.pop(0))
    if local:
        a("s_waitcnt vmcnt(0)")
        a(f"v_cmp_ne_u32 vcc, s67, v{HV}")
        a("s_mov_b64 s[56:57], vcc")
        a("s_nop 2")
    else:
        a("s_nop 5")
    a(f"v_max3_f32 v{MX}, v{SA}, v{SA+1}, v{SA+2}")
    a(f"v_max3_f32 v{TM}, v{SA+3}, v{SA+4}, v{SA+5}")
    a(f"v_max3_f32 v{MX}, v{MX}, v{SA+6}, v{SA+7}")
    a(f"v_max3_f32 v{TM}, v{TM}, v{SA+8}, v{SA+9}")
    a(f"v_max3_f32 v{MX}, v{MX}, v{SA+10}, v{SA+11}")
    a(f"v_max_f32 v{MX}, v{MX}, v{TM}")
    for sw in ("v_permlane32_swap_b32", "v_permlane16_swap_b32"):
        a(f"v_mov_b32 v{TM}, v{MX}")
        a("s_nop 1")
        a(f"{sw} v{MX}, v{TM}")
        a("s_nop 1")
        a(f"v_max_f32 v{MX}, v{MX}, v{TM}")
    a(f"v_mul_f32 v{MX}, s14, v{MX}")
    for k in range(12):
        a(f"v_fma_f32 v{SA+k}, v{SA+k}, s14, -v{MX}")
    for k in range(12):
        a(f"v_exp_f32 v{SA+k}, v{SA+k}")
        if k >= 3 and k % 2 == 1:
            kk = (k - 3) // 2
            a(f"v_cvt_pk_bf16_f32 v{PF+kk}, v{SA+2*kk}, v{SA+2*kk+1}")
    a(f"v_cvt_pk_bf16_f32 v{PF+5}, v{SA+10}, v{SA+11}")
    stamp(cst and fine)
    if vlate: e.drain()
    def m32(t):
        d = OA + 4 * t
        return f"v_mfma_f32_16x16x32_bf16 v[{d}:{d+3}], v[{VT32+4*t}:{VT32+4*t+3}], v[{PF}:{PF+3}], 0"
    def m16(t):
        d = OA + 4 * t
        return f"v_mfma_f32_16x16x16_bf16 v[{d}:{d+3}], v[{VT16+2*t}:{VT16+2*t+1}], v[{PF+4}:{PF+5}], v[{d}:{d+3}]"
    a(f"v_mfma_f32_16x16x32_bf16 v[{LS}:{LS+3}], v[{ONE}:{ONE+3}], v[{PF}:{PF+3}], 0")
    for t in range(6): a(m32(t))
    a(f"v_mfma_f32_16x16x16_bf16 v[{LS}:{LS+3}], v[{ONE}:{ONE+1}], v[{PF+4}:{PF+5}], v[{LS}:{LS+3}]")
    for x in (m16(0), m16(1), m32(6), m32(7), m16(2), m16(3), m16(4), m16(5)): a(x)
    a(f"v_rcp_f32 v{MX}, v{LS}")
    a("s_nop 0")
    a(m16(6))
    a(f"v_mov_b32 v{TM}, v{MX}")
    a(m16(7))
    def fin_all(fl):
        for u in range(4):
            for tt in range(2):
                d = OA + 4 * (2 * u + tt)
                a(f"v_pk_mul_f32 v[{d}:{d+1}], v[{d}:{d+1}], v[{MX}:{TM}]")
                a(f"v_pk_mul_f32 v[{d+2}:{d+3}], v[{d+2}:{d+3}], v[{MX}:{TM}]")
                a(f"v_cvt_pk_bf16_f32 v{OPK+4*u+2*tt}, v{d}, v{d+1}")
                a(f"v_cvt_pk_bf16_f32 v{OPK+4*u+2*tt+1}, v{d+2}, v{d+3}")
            a(f"buffer_store_dwordx4 v[{OPK+4*u}:{OPK+4*u+3}], v3, s[32:35], s63 offen offset:{u*1024}{fl}")
            a(f"ds_write_b128 v16, v[{OPK+4*u}:{OPK+4*u+3}] offset:{u*1024}")
    if ldata:
        a("s_cmp_lg_u64 s[56:57], 0")
        a("s_cbranch_scc1 L_og")
        fin_all("")
        a("s_branch L_od")
        a("L_og:")
    fin_all(" sc1")
    if ldata:
        a("L_od:")
    def flag1_store():
        a("s_waitcnt vmcnt(0)")
        a("s_mov_b64 exec, 1")
        if local:
            l1 = a.label("L_fg"); l2 = a.label("L_fd")
            a("s_cmp_lg_u64 s[56:57], 0")
            a(f"s_cbranch_scc1 {l1}")
            a("buffer_store_dword v18, v17, s[32:35], s64 offen")
            a(f"s_branch {l2}")
            a(f"{l1}:")
        a("buffer_store_dword v18, v17, s[32:35], s64 offen sc1")
        if local:
            a(f"{l2}:")
        a("s_mov_b64 exec, -1")
    stamp(cst or e1st)
    a("s_cmp_lt_u32 s3, 4")
    a("s_cbranch_scc1 L_p2")
    a("s_waitcnt lgkmcnt(0)")
    a("s_barrier")
    a("s_barrier")
    flag1_store()
    if bz2 is not None:
        a("s_barrier")
    a("s_branch L_reducer")
    a("L_p2:")

    e.q = []
    ACC2 = 24
    WF = 128
    PK = 88
    NST = 5
    def bslot(ks, qt): return ((ks % NST) * 3 + qt) * 4
    def wreads(ks):
        m, u = ORDER[ks >> 1], ks & 1
        b = ks % 2
        L = []
        for nt in range(5):
            ad = PA + 3 + 2 * (m // 3) + (nt & 1)
            for hf in range(2):
                r = WF + b * 20 + nt * 4 + 2 * hf
                off = (m % 3) * WOCH + (32 * u + 16 * hf) * 320 + 32 * nt
                L.append(f"ds_read_b64_tr_b16 v[{r}:{r+1}], v{ad} offset:{off}")
        return L
    def treads(nt):
        L = []
        b = nt % 2
        for ks in range(12, 16):
            m, u = ORDER[ks >> 1], ks & 1
            ad = PA + 3 + 2 * (m // 3) + (nt & 1)
            for hf in range(2):
                r = WF + b * 20 + (ks - 12) * 4 + 2 * hf
                off = (m % 3) * WOCH + (32 * u + 16 * hf) * 320 + 32 * nt
                L.append(f"ds_read_b64_tr_b16 v[{r}:{r+1}], v{ad} offset:{off}")
        return L
    def mf2(ks):
        b = ks % 2
        L = []
        for nt in range(5):
            for qt in range(3):
                d = ACC2 + (nt * 3 + qt) * 4
                A = WF + b * 20 + nt * 4
                B = bslot(ks, qt)
                C = "0" if ks == 0 else f"v[{d}:{d+3}]"
                L.append(f"v_mfma_f32_16x16x32_bf16 v[{d}:{d+3}], v[{A}:{A+3}], a[{B}:{B+3}], {C}")
        return L
    def oloads(ks):
        L = []
        for qt in range(3):
            r = bslot(ks, qt)
            L.append(f"buffer_load_dwordx4 a[{r}:{r+3}], v{PA+qt}, s[32:35], s{6+(ks>>1)} offen offset:{(ks&1)*1024} sc1")
        vm.issue(("O", ks), 3)
        return L
    def emit(M, W, O):
        slots = [[] for _ in M]
        for k, wr in enumerate(W): slots[min(k, len(M) - 1)].append(wr)
        for k, o in enumerate(O): slots[(k * len(M)) // max(len(O), 1)].append(o)
        for m, sl in zip(M, slots):
            e(m)
            for x in sl: e(x)
    early0 = wo7pos is not None
    if early0:
        for r in wreads(0): e(r)
    e.drain()
    a("s_barrier")
    stamp(cst or e1st)
    if not early0:
        for r in wreads(0): e(r)
    for ks in range(4):
        for qt in range(3):
            r = bslot(ks, qt)
            e(f"ds_read_b128 a[{r}:{r+3}], v{PA + 9 + (ks >> 1)} offset:{qt*4096 + (ks&1)*1024}")
    emit(mf2(0), wreads(1), [])
    e.wait_first(10)
    stamp(e1st)
    a("s_barrier")
    stamp(e1st)
    flag1_store()
    stamp(e1st)
    a(f"buffer_load_dword v23, v{PA+11}, s[32:35], s62 offen sc1")
    for ks in range(1, ownpre):
        emit(mf2(ks), wreads(ks + 1), [])
    def wait_head(hh, first):
        lp = a.label("L_p1"); lc = a.label("L_c1"); lg = a.label("L_g1")
        need = f"s{16+hh}" if lazy else "0xfff"
        if first:
            a("s_mov_b32 s53, 0")
            a(f"s_branch {lc}")
        else:
            a(f"s_andn2_b32 s54, {need}, s15")
            a(f"s_cbranch_scc0 {lg}")
        a(f"{lp}:")
        a(f"buffer_load_dword v23, v{PA+11}, s[32:35], s62 offen sc1")
        a("s_add_u32 s53, s53, 1")
        a("s_cmp_ge_u32 s53, 0x100000")
        a(f"s_cbranch_scc1 {lg}")
        a(f"{lc}:")
        a("s_waitcnt vmcnt(0)")
        a("v_cmp_eq_u32 vcc, s52, v23")
        a("s_mov_b32 s15, vcc_lo")
        a(f"s_andn2_b32 s54, {need}, s15")
        a(f"s_cbranch_scc1 {lp}")
        a(f"{lg}:")
    stamp(p2st or e1st)
    wait_head(1, True)
    vm.reset()
    stamp(cst or p2st or e1st)
    for l in oloads(4): a(l)
    issued = 5
    for ks in range(ownpre, 12):
        if ks == bzks:
            a("s_barrier")
            stamp(cst)
        if ks == bz2:
            a("s_barrier")
        if ks >= 4:
            vm.wait(("O", ks))
        W = wreads(ks + 1) if ks + 1 < 12 else treads(0)
        O = []
        nnew = 0
        while issued < 16 and issued <= ks + odist and nnew < 2:
            if lazy and issued % 4 == 0:
                if nnew: break
                wait_head(issued // 4, False)
            O += oloads(issued); issued += 1; nnew += 1
        emit(mf2(ks), W, O)
        stamp(p2st or (e1st and ks < 8))
    assert issued == 16
    def pcvt(f):
        d = ACC2 + f * 4; o = PK + 2 * f
        L = [f"v_cvt_pk_bf16_f32 v{o}, v{d}, v{d+1}", f"v_cvt_pk_bf16_f32 v{o+1}, v{d+2}, v{d+3}"]
        if f % 2 == 1 or f == 14:
            u = f // 2
            L.append(f"buffer_store_dwordx4 v[{PK+4*u}:{PK+4*u+3}], v{PA+13}, s[32:35], {'s65' if u < 4 else 's66'} offen offset:{(u%4)*1024} sc1")
        return L
    for nt in range(5):
        if nt == bant:
            a("s_barrier")
        M = []
        for ks in range(12, 16):
            for qt in range(3):
                d = ACC2 + (nt * 3 + qt) * 4
                A = WF + (nt % 2) * 20 + (ks - 12) * 4
                B = bslot(ks, qt)
                M.append(f"v_mfma_f32_16x16x32_bf16 v[{d}:{d+3}], v[{A}:{A+3}], a[{B}:{B+3}], v[{d}:{d+3}]")
        W = treads(nt + 1) if nt < 4 else []
        X = []
        if nt > 0:
            for qt in range(3): X += pcvt((nt - 1) * 3 + qt)
        slots = [[] for _ in M]
        for k, wr in enumerate(W): slots[k // 2].append(wr)
        st = 4 if W else 6
        for k, x in enumerate(X): slots[min(st + (k * (12 - st)) // len(X), 11)].append(x)
        for k, (m, sl) in enumerate(zip(M, slots)):
            if nt == 0 and k % 3 == 0:
                vm.wait(("O", 12 + k // 3))
            e(m)
            for x in sl: e(x)
    stamp(p2st)
    if bant == 5:
        a("s_barrier")
    stamp(cst)
    a("s_nop 5")
    for qt in range(3):
        for x in pcvt(12 + qt): a(x)
    a("s_mov_b64 exec, 0xff")
    a("s_waitcnt vmcnt(0)")
    if f2atom:
        a(f"buffer_atomic_swap v18, v{PA+14}, s[32:35], s69 offen sc1")
    else:
        a(f"buffer_store_dword v18, v{PA+14}, s[32:35], s69 offen {f2st}")
    if stamps and (cst or p2st or e1st):
        stamp()
        a("s_mov_b64 exec, -1")
        store_stamps(nstamp[0])
    a("L_end:")
    a("s_endpgm")
    txt = HEADER_COMMENTS + f"; @launch grid=(256,1,1) block=(512,1,1) lds={LDS_TOTAL}\n" + a.text()
    txt += '.section .rodata,"a"\n' + kernel_desc(name, 256, 102, 192)
    open(out, "w").write(txt)
    return nl if lst else nstamp[0]

if __name__ == "__main__":
    gen("k13.s")
    F = []
    def v(name, **kw):
        nl = gen(name, stamps=True, swave=6, allst=True, **kw); F.append(name); return nl
    v("k13a.s", fronts=0, lateT=False, at9=(4,), atq=(5, 6, 0))
    v("k13b.s")
    v("k13c.s", at9=(4,), atq=(5, 6, 0, 1))
    v("k13d.s", at9=(4, 5), atq=(6, 0))
    v("k13e.s", kvpos=4, vpos=6, wo7pos=8)
    v("k13f.s", throttle=None)
    print(" ".join(F))
```

```python
import sys, math, struct, re
from asmgen import *
from gen13 import VM, Emit

WS_EPOCH = 0x0
WS_HELLO = 0x1000
WS_FLAG1 = 0x4000
WS_FLAG2 = 0x20000
WS_P     = 0x100000
WS_PART  = 0x800000
WS_STAMP = 0x8000000

SLB = 32768
XB = 12288
KB_LDS = 3 * SLB
QB_LDS = 2 * SLB
QSLOT = [4, 1, 3, 0, 4, 1, 3, 0]
PAREA = [0, 9216, 18432, 0]
LDS_TOTAL = 163840
PSZ = 32768


def gen(out, stamps=False, cyc=False, local=True, throttle=None, swave=0, kpos=4, kvlast=8, lprio=2, lprio2=1, aprio=1,
        fronts=3, allst=False, padfrom=None, n8=9, n9=20, ny=(8, 12, 16, 16, 16, 16, 16, 16), smper=2, nopk=True, hprio=3, npre=13, hsplit=26, cpf=True):
    a = Asm()
    name = NAME + "_kernel"
    nstamp = [0]
    def stamp(on=True):
        if not stamps or not on:
            return
        r = 70 + 2 * nstamp[0]
        assert r + 1 <= 101
        nstamp[0] += 1
        a(f"{'s_memtime' if cyc else 's_memrealtime'} s[{r}:{r+1}]")
    lst = swave == 6
    cst = swave < 4
    def store_stamps(n):
        a("s_waitcnt vmcnt(0) lgkmcnt(0)")
        a(f"s_cmp_lg_u32 s3, {swave}")
        a("s_cbranch_scc1 L_end")
        a("s_lshl_b32 s54, s2, 8")
        a(f"s_add_u32 s54, s54, {WS_STAMP}")
        a("v_mov_b32 v5, 0")
        a("s_mov_b64 exec, 1")
        for i in range(n):
            r = 70 + 2 * i
            a(f"v_mov_b32 v6, s{r}")
            a(f"v_mov_b32 v7, s{r+1}")
            a(f"buffer_store_dwordx2 v[6:7], v5, s[32:35], s54 offen offset:{8*i}")
            a("s_nop 1")

    ACC = 32; KF = 92; QB = 64
    HV = 140; KA = 141; TA_ = 142
    PW4 = 80; PW2 = 81; L8 = 82; VF = 83; VT = 84; QRA = 85; QWA = 86; WOE = 87; WOO = 88

    a('.amdgcn_target "amdgcn-amd-amdhsa--gfx950"')
    a(".text")
    kernel_begin(a, name)
    a("s_cmp_ge_u32 s2, 256")
    a("s_cbranch_scc1 L_end")
    stamp()
    a("s_load_dwordx16 s[36:51], s[0:1], 0")
    a("v_lshrrev_b32 v2, 6, v0")
    a("v_and_b32 v1, 63, v0")
    a("s_and_b32 s6, s2, 7")
    a("v_readfirstlane_b32 s3, v2")
    a("s_lshr_b32 s7, s2, 3")
    a("s_and_b32 s7, s7, 3")
    a("s_lshr_b32 s5, s2, 5")
    a("s_lshl_b32 s4, s6, 2")
    a("s_add_u32 s4, s4, s7")
    a("v_lshrrev_b32 v2, 4, v1")
    a("v_lshlrev_b32 v3, 4, v1")
    a("s_and_b32 s58, s3, 1")
    a("s_cmp_lt_u32 s3, 4")
    a("s_cbranch_scc1 L_compute")

    def att_setup():
        a("s_lshl_b32 s54, s5, 7")
        a("s_load_dword s52, s[50:51], s54")
        a("s_cmp_ge_u32 s3, 3")
        a("s_cselect_b32 s60, 1, 0")
        a("s_mul_i32 s54, s60, 3")
        a("s_sub_u32 s61, s3, s54")
        a("v_and_b32 v16, 15, v1")
        a("v_lshrrev_b32 v17, 1, v2")
        a("v_xor_b32 v17, v17, v16")
        a("v_lshlrev_b32 v17, 4, v17")
        a("v_lshl_add_u32 v17, v16, 8, v17")
        a("v_and_b32 v18, 1, v2")
        a("v_lshl_add_u32 v17, v18, 3, v17")
        a("s_mul_i32 s54, s60, 12288")
        a(f"s_add_u32 s54, s54, {KB_LDS}")
        a(f"v_add_u32 v{KA}, s54, v17")
        a("s_lshl_b32 s54, s5, 3")
        a("s_add_u32 s54, s54, s6")
        a("s_lshl_b32 s55, s54, 7")
        a(f"s_add_u32 s68, s55, {WS_HELLO}")
        a("s_lshl_b32 s55, s54, 8")
        a(f"s_add_u32 s62, s55, {WS_FLAG1}")
        a("s_lshl_b32 s55, s60, 7")
        a("s_add_u32 s64, s62, s55")
        a("s_mul_i32 s54, s54, 36864")
        a(f"s_add_u32 s45, s54, {WS_P}")
        a("s_mul_i32 s54, s7, 9216")
        a("s_add_u32 s54, s54, s45")
        a("s_mul_i32 s55, s3, 1536")
        a("s_add_u32 s63, s54, s55")
        a("s_add_u32 s36, s7, s5")
        a("s_and_b32 s36, s36, 3")
        a("s_lshr_b32 s37, s5, 2")
        a(f"s_add_u32 s55, s55, {QB_LDS}")
        a(f"v_add_u32 v{PW4}, s55, v3")
        a(f"v_lshlrev_b32 v{L8}, 3, v1")
        a(f"v_add_u32 v{PW2}, s55, v{L8}")
        a("s_lshl_b32 s55, s3, 12")
        a(f"s_add_u32 s55, s55, {QB_LDS + 8192}")
        a(f"v_add_u32 v{QRA}, s55, v3")
        a("s_mul_i32 s54, s7, 3")
        a("s_add_u32 s54, s54, s61")
        a("s_lshl_b32 s54, s54, 2")
        a(f"v_mov_b32 v{VF}, s54")
        a("s_lshl_b32 s54, s5, 2")
        a("s_add_u32 s54, s54, s36")
        a(f"s_mul_i32 s54, s54, {8*PSZ}")
        a(f"s_add_u32 s43, s54, {WS_PART}")
    def tag_setup():
        a("s_waitcnt lgkmcnt(0)")
        a("s_mul_i32 s52, s52, 0x41C64E6D")
        a("s_add_u32 s52, s52, 0x3039")
        a(f"v_mov_b32 v{VT}, s52")
        if local:
            a("s_getreg_b32 s54, hwreg(HW_REG_XCC_ID, 0, 4)")
            a("s_lshl_b32 s54, s54, 8")
            a("s_or_b32 s54, s54, 0x5a")
            a("s_xor_b32 s67, s52, s54")
    KL = []
    for x in range(8):
        t = TA_ + (x & 1)
        KL.append(f"v_xor_b32 v{t}, {x*32}, v{KA}")
        for kt in range(3):
            r = KF + (kt * 4 + (x >> 1)) * 4 + (x & 1) * 2
            KL.append(f"ds_read_b64 v[{r}:{r+1}], v{t} offset:{kt*4096}")
    def hello_load():
        return ["v_and_b32 v20, 3, v1", "v_lshlrev_b32 v20, 2, v20",
                f"buffer_load_dword v{HV}, v20, s[32:35], s68 offen sc1"]
    sched = {c: [] for c in range(10)}
    for k in range(8):
        best = min(range(kpos + 1, kvlast + 1), key=lambda c: (len(sched[c]), c))
        sched[best] += KL[4*k:4*k+4]

    vm = VM(a)
    a(f"s_setprio {lprio}")
    a("s_and_b32 s59, s3, 3")
    if fronts == 3:
        a("s_add_u32 s53, s7, s5")
        a("s_mul_i32 s54, s53, 43")
        a("s_lshr_b32 s54, s54, 7")
        a("s_mul_i32 s54, s54, 3")
        a("s_sub_u32 s53, s53, s54")
        a("s_mul_i32 s53, s53, 7")
        a("s_lshr_b32 s53, s53, 1")
        a("s_add_u32 s53, s53, s6")
    else:
        a("s_mul_i32 s53, s7, 3")
        a("s_add_u32 s53, s53, s5")
        a("s_add_u32 s53, s53, s6")
    for _ in range(2):
        a("s_cmp_ge_u32 s53, 10")
        a("s_cselect_b32 s54, 10, 0")
        a("s_sub_u32 s53, s53, s54")
    a("v_lshrrev_b32 v20, 3, v1")
    a("v_and_b32 v21, 7, v1")
    a("v_xor_b32 v21, v21, v2")
    a("s_mul_i32 s54, s5, 96")
    a("s_mul_i32 s55, s59, 24")
    a("s_add_u32 s54, s54, s55")
    a("v_add_u32 v20, s54, v20")
    a("v_mul_u32_u24 v20, 1280, v20")
    a("s_lshl_b32 s55, s58, 2")
    a("v_xor_b32 v22, s55, v21")
    a("v_xor_b32 v23, 4, v22")
    a("v_lshl_add_u32 v4, v22, 4, v20")
    a("v_lshl_add_u32 v5, v23, 4, v20")
    a(f"v_add_u32 v5, {10240-1024}, v5")
    a(f"v_add_u32 v6, {2*(10240-1024)}, v4")
    a("v_and_b32 v20, 15, v1")
    a("v_lshlrev_b32 v21, 1, v2")
    a("v_xor_b32 v20, v20, v21")
    a("s_lshl_b32 s54, s59, 4")
    a("v_add_u32 v21, s54, v2")
    a("v_lshlrev_b32 v21, 13, v21")
    a("s_lshl_b32 s54, s4, 8")
    a("v_add_u32 v21, s54, v21")
    a("v_lshl_add_u32 v7, v20, 4, v21")
    a(f"v_add_u32 v8, {32768-1024}, v7")
    a("v_xor_b32 v20, 8, v20")
    a("v_lshl_add_u32 v9, v20, 4, v21")
    a(f"v_add_u32 v9, {2*(32768-1024)}, v9")
    a(f"v_add_u32 v10, {32768-1024}, v9")
    a("s_mul_i32 s56, s59, 3072")
    a("s_lshl_b32 s57, s59, 12")
    a(f"s_add_u32 s57, s57, {XB}")
    a("s_waitcnt lgkmcnt(0)")
    srd(a, 8, 36, X_BYTES)
    srd(a, 20, 42, WQ_BYTES)

    def issue_chunk(c):
        sl = (c % 3) * SLB
        a("s_lshl_b32 s54, s53, 7")
        a(f"s_add_u32 m0, s56, {sl}")
        a("s_lshl_b32 s55, s53, 19")
        for i in range(3):
            a(f"buffer_load_dwordx4 v{4+i}, s[8:11], s54 offen offset:{i*1024} lds")
        a(f"s_add_u32 m0, s57, {sl}")
        a("s_add_u32 s53, s53, 1")
        for i in range(4):
            a(f"buffer_load_dwordx4 v{7+i}, s[20:23], s55 offen offset:{i*1024} lds")
        vm.issue(("c", c), 7)
        a("s_cmp_ge_u32 s53, 10")
        a("s_cselect_b32 s53, 0, s53")
    def issue_k():
        for i in range(6):
            if i % 4 == 0:
                a(f"s_add_u32 m0, s65, {KB_LDS + i*1024}")
                a(f"s_add_u32 s54, s66, {i*1024}")
            a(f"buffer_load_dwordx4 v{11 + (i & 3)}, s[12:15], s54 offen offset:{(i%4)*1024} lds")
        vm.issue("k", 6)
    issue_chunk(0)
    issue_chunk(1)
    srd(a, 12, 38, KV_BYTES)
    srd(a, 16, 40, KV_BYTES)
    srd(a, 32, 50, WS_BYTES)
    srd(a, 24, 44, WO_BYTES)
    srd(a, 28, 46, OUT_BYTES)
    a("s_lshr_b32 s55, s59, 1")
    a("s_lshl_b32 s54, s5, 1")
    a("s_add_u32 s54, s54, s55")
    a("s_lshl_b32 s54, s54, 5")
    a("s_add_u32 s54, s54, s4")
    a("s_mul_i32 s54, s54, 12288")
    a("s_mul_i32 s55, s58, 6144")
    a("s_add_u32 s66, s54, s55")
    a("s_mul_i32 s65, s59, 6144")
    a("v_lshlrev_b32 v20, 4, v2")
    a("v_xor_b32 v20, v3, v20")
    for i in range(4):
        a(f"s_lshl_b32 s54, s58, 1")
        a(f"s_add_u32 s54, s54, {i}")
        a("s_and_b32 s54, s54, 3")
        a("s_lshl_b32 s54, s54, 6")
        a(f"v_xor_b32 v{11+i}, s54, v20")
    att_setup()
    WOV = 144
    for i in range(5):
        a(f"v_add_u32 v20, {64*i}, v1")
        a("v_mul_u32_u24 v21, 52429, v20")
        a("v_lshrrev_b32 v21, 20, v21")
        a("v_mul_u32_u24 v23, 20, v21")
        a("v_sub_u32 v20, v20, v23")
        a("v_bfe_u32 v23, v21, 3, 1")
        a("v_lshlrev_b32 v23, 1, v23")
        a("v_xor_b32 v20, v23, v20")
        a("v_mul_u32_u24 v21, 1280, v21")
        a(f"v_lshl_add_u32 v{WOV+i}, v20, 4, v21")
        if 0 < i < 4:
            a(f"v_subrev_u32 v{WOV+i}, {1024*i}, v{WOV+i}")
    a("v_lshrrev_b32 v20, 3, v1")
    a("v_lshlrev_b32 v20, 8, v20")
    a("v_and_b32 v21, 7, v1")
    a("v_xor_b32 v21, v21, v2")
    a(f"v_lshl_add_u32 v{WOV+5}, v21, 4, v20")
    a("v_xor_b32 v21, 4, v21")
    a(f"v_lshl_add_u32 v{WOV+6}, v21, 4, v20")
    a(f"v_add_u32 v{WOV+6}, 1024, v{WOV+6}")
    a(f"v_add_u32 v{WOV+7}, 2048, v{WOV+5}")
    a(f"v_add_u32 v{WOV+8}, 2048, v{WOV+6}")
    a("s_mul_i32 s40, s6, 655360")
    a("s_mul_i32 s54, s36, 320")
    a("s_add_u32 s40, s40, s54")
    a("s_mul_i32 s54, s58, 20480")
    a("s_add_u32 s40, s40, s54")
    a("s_mul_i32 s41, s58, 5120")
    a(f"s_add_u32 s41, s41, {XB}")
    a("s_lshl_b32 s54, s5, 1")
    a("s_add_u32 s54, s54, s58")
    a("s_lshl_b32 s54, s54, 5")
    a("s_lshl_b32 s55, s6, 2")
    a("s_add_u32 s54, s54, s55")
    a("s_mul_i32 s38, s54, 12288")
    a("s_mul_i32 s39, s58, 6144")
    a("s_lshl_b32 s54, s2, 2")
    a("s_add_u32 s54, s54, s59")
    a("s_lshl_b32 s54, s54, 7")
    a(f"s_add_u32 s69, s54, {WS_FLAG2}")
    a("s_load_dword s42, s[50:51], s69")
    a("s_add_u32 s54, s69, 64")
    a("s_load_dword s42, s[50:51], s54")
    a("s_lshl_b32 s54, s58, 7")
    a("s_add_u32 s62, s62, s54")
    a("s_load_dword s42, s[50:51], s62")
    a("s_add_u32 s54, s62, 64")
    a("s_load_dword s42, s[50:51], s54")

    def q_items(q):
        sl = QSLOT[q] * SLB
        pre = (f"s_add_u32 s54, s7, {q>>1}\ns_and_b32 s54, s54, 3\ns_xor_b32 s55, s37, {q&1}\ns_mul_i32 s56, s54, 12288\n"
               "s_lshl_b32 s57, s55, 7\ns_add_u32 s56, s56, s57\ns_add_u32 s56, s56, s38\ns_lshl_b32 s54, s54, 1\n"
               "s_add_u32 s54, s54, s55\ns_mul_i32 s54, s54, 81920\ns_add_u32 s54, s54, s40\n")
        L = []
        for i in range(6):
            t = pre if i == 0 else ""
            if i % 4 == 0:
                t += f"s_add_u32 m0, s39, {sl + i*1024}\n" + ("s_add_u32 s56, s56, 8192\n" if i else "s_nop 0\n")
            t += f"buffer_load_dwordx4 v{WOV+5+(i&3)}, s[16:19], s56 offen offset:{(i%4)*1024} lds"
            L.append(t)
        for blk in range(2):
            for i in range(5):
                t = ""
                if i == 0:
                    t += f"s_add_u32 m0, s41, {sl + blk*10240}\n" + ("s_add_u32 s54, s54, 40960\n" if blk else "s_nop 0\n")
                if i == 4:
                    t += f"s_add_u32 m0, s41, {sl + blk*10240 + 4096}\ns_nop 0\nbuffer_load_dwordx4 v{WOV+i}, s[24:27], s54 offen lds"
                else:
                    t += f"buffer_load_dwordx4 v{WOV+i}, s[24:27], s54 offen offset:{i*1024} lds"
                L.append(t)
        return L
    QS = [(q, t) for q in range(8) for t in q_items(q)]
    qpos = [0]
    def issue_upto(n, maxq):
        while qpos[0] < min(n, (maxq + 1) * 16):
            q, t = QS[qpos[0]]
            a(t); vm.issue(("q", q)); qpos[0] += 1
    if kpos == 1: issue_k()
    def ld_k(c):
        part = sched[c]
        if not part: return
        l = a.label("L_nok")
        a("s_cmp_ge_u32 s3, 6")
        a(f"s_cbranch_scc1 {l}")
        for r in part: a(r)
        a(f"{l}:")
    for c in range(8):
        vm.wait(("c", c))
        a("s_barrier")
        stamp(lst and (allst or c % 2 == 0))
        issue_chunk(c + 2)
        if c + 2 == kpos: issue_k()
        if c == 1: tag_setup()
        ld_k(c)
    vm.wait(("c", 8))
    a("s_cmp_ge_u32 s3, 6")
    a("s_cbranch_scc1 L_q_loader")
    a("s_barrier")
    if local:
        for l in hello_load(): a(l)
    for r in sched[8]: a(r)
    a(f"s_waitcnt vmcnt({1 if local else 0}) lgkmcnt(0)")
    a("s_barrier")
    a("s_branch L_attn")
    a("L_q_loader:")
    a("s_barrier")
    stamp(lst)
    issue_upto(n8, 1)
    vm.wait(("c", 9))
    a("s_barrier")
    stamp(lst)
    a(f"s_setprio {lprio2}")
    issue_upto(n8 + n9, 2)
    a("s_barrier")
    stamp(lst)
    for q in range(0, 8):
        issue_upto(max((q + 1) * 16, qpos[0] + ny[q]), min(max(q + 2, 3), 7))
        vm.wait(("q", q))
        a("s_barrier")
    assert qpos[0] == 128
    stamp(lst)

    a("L_reducer:")
    a("s_setprio 0")
    a("v_and_b32 v22, 7, v1")
    a("v_lshlrev_b32 v22, 2, v22")
    a("s_waitcnt lgkmcnt(0)")
    a("s_lshr_b32 s60, s6, 2")
    a("s_and_b32 s61, s6, 3")
    a("s_lshr_b32 s40, s59, 1")
    a("v_bfe_u32 v7, v1, 2, 2")
    a("v_and_b32 v8, 3, v1")
    a("s_lshl_b32 s54, s58, 2")
    a("v_add_u32 v9, s54, v2")
    a("v_lshlrev_b32 v4, 10, v9")
    a("v_lshl_add_u32 v4, v8, 6, v4")
    a("v_lshl_add_u32 v4, v7, 4, v4")
    a("s_lshl_b32 s54, s60, 1")
    a("s_add_u32 s54, s54, s40")
    a("s_lshl_b32 s54, s54, 13")
    a("s_lshl_b32 s55, s61, 8")
    a("s_add_u32 s54, s54, s55")
    a("s_add_u32 s43, s43, s54")
    a("v_lshlrev_b32 v9, 1, v9")
    a("v_add_u32 v10, 1, v9")
    for (f, d) in ((9, 5), (10, 6)):
        a(f"v_mul_u32_u24 v13, 43, v{f}")
        a("v_lshrrev_b32 v13, 7, v13")
        a("v_mul_u32_u24 v14, 3, v13")
        a(f"v_sub_u32 v14, v{f}, v14")
        a("v_lshl_add_u32 v14, v14, 4, v7")
        a("v_mul_u32_u24 v14, 1280, v14")
        a(f"v_lshl_add_u32 v{d}, v13, 5, v14")
        a(f"v_lshl_add_u32 v{d}, v8, 3, v{d}")
    a("v_cmp_gt_u32 s[38:39], 15, v10")
    a("s_mul_i32 s54, s5, 96")
    a("s_mul_i32 s55, s60, 48")
    a("s_add_u32 s54, s54, s55")
    a("s_lshl_b32 s55, s61, 2")
    a("s_add_u32 s54, s54, s55")
    a("s_mul_i32 s54, s54, 1280")
    a("s_mul_i32 s55, s36, 320")
    a("s_add_u32 s54, s54, s55")
    a("s_mul_i32 s55, s40, 160")
    a("s_add_u32 s60, s54, s55")
    for src in range(8):
        a(f"s_add_u32 s{8+src}, s43, {src*PSZ}")
    a("s_mov_b32 s42, 0xffff0000")
    a("s_mov_b32 s53, 0")
    a("s_mov_b32 s61, 0")
    a("s_mov_b32 s41, 0")
    a("s_barrier")
    stamp(lst)
    a("L_poll2:")
    a("buffer_load_dword v23, v22, s[32:35], s69 offen sc1")
    a("s_add_u32 s53, s53, 1")
    a("s_cmp_ge_u32 s53, 0x100000")
    a("s_cbranch_scc1 L_got2")
    a("s_waitcnt vmcnt(0)")
    a("v_cmp_eq_u32 vcc, s52, v23")
    a("s_and_b32 s54, vcc_lo, 0xff")
    a("s_andn2_b32 s54, s54, s61")
    a("s_cbranch_scc0 L_poll2")
    a("s_or_b32 s61, s61, s54")
    for src in range(8):
        l = a.label("L_ns")
        a(f"s_bitcmp1_b32 s54, {src}")
        a(f"s_cbranch_scc0 {l}")
        r = 24 + 4 * src
        a(f"buffer_load_dwordx4 v[{r}:{r+3}], v4, s[32:35], s{8+src} offen sc1")
        a(f"{l}:")
    a("s_mov_b32 s55, s41")
    a("s_mov_b32 s41, s54")
    a("L_unp:")
    for src in range(8):
        l = a.label("L_nu")
        a(f"s_bitcmp1_b32 s55, {src}")
        a(f"s_cbranch_scc0 {l}")
        r = 24 + 4 * src; b = 64 + 8 * src
        for k in range(4):
            a(f"v_lshlrev_b32 v{b+2*k}, 16, v{r+k}")
            a(f"v_and_b32 v{b+1+2*k}, s42, v{r+k}")
        a(f"{l}:")
    a("s_cmp_lg_u32 s61, 0xff")
    a("s_cbranch_scc1 L_poll2")
    a("s_cmp_eq_u32 s41, 0")
    a("s_cbranch_scc1 L_got2")
    stamp(lst)
    a("s_waitcnt vmcnt(0)")
    a("s_mov_b32 s55, s41")
    a("s_mov_b32 s41, 0")
    a("s_branch L_unp")
    a("L_got2:")
    for lvl in (32, 16, 8):
        for r in range(0, lvl, 2):
            a(f"v_pk_add_f32 v[{64+r}:{65+r}], v[{64+r}:{65+r}], v[{64+lvl+r}:{65+lvl+r}]")
    for k in range(4):
        a(f"v_cvt_pk_bf16_f32 v{80+k}, v{64+2*k}, v{65+2*k}")
    a("buffer_store_dwordx2 v[80:81], v5, s[28:31], s60 offen")
    a("s_mov_b64 exec, s[38:39]")
    a("buffer_store_dwordx2 v[82:83], v6, s[28:31], s60 offen")
    a("s_mov_b64 exec, -1")
    a("s_and_b32 s54, s2, 31")
    a("s_or_b32 s54, s54, s59")
    a("s_cmp_lg_u32 s54, 0")
    a("s_cbranch_scc1 L_noep")
    a("s_lshl_b32 s54, s5, 7")
    a("v_mov_b32 v20, 0")
    a("v_mov_b32 v21, s52")
    a("s_mov_b64 exec, 1")
    a("buffer_store_dword v21, v20, s[32:35], s54 offen sc1")
    a("s_mov_b64 exec, -1")
    a("L_noep:")
    if stamps and lst:
        a("s_waitcnt vmcnt(0)")
        stamp()
        store_stamps(nstamp[0])
    a("s_endpgm")
    nl = nstamp[0]
    if stamps:
        nstamp[0] = 1

    a("L_compute:")
    e = Emit(a)
    if cpf:
        a("s_getpc_b64 s[8:9]")
        a("L_pc:")
        a(f"s_sub_u32 s8, s8, L_pc-{name}")
        a("s_subb_u32 s9, s9, 0")
        a("s_lshr_b32 s10, s2, 3")
        a("s_lshl_b32 s10, s10, 2")
        a("s_add_u32 s10, s10, s3")
        a("s_lshl_b32 s10, s10, 6")
        for k in range(3):
            a(f"s_min_u32 s11, s10, L_end-{name}")
            a("s_load_dword s12, s[8:9], s11")
            a("s_add_u32 s10, s10, 8192")
    a("s_lshr_b32 s59, s3, 1")
    a("v_and_b32 v20, 15, v1")
    a("v_lshrrev_b32 v21, 1, v20")
    a("v_xor_b32 v21, v21, v2")
    a("s_mul_i32 s54, s59, 48")
    a("v_add_u32 v20, s54, v20")
    a("v_lshlrev_b32 v20, 7, v20")
    a("v_lshl_add_u32 v4, v21, 4, v20")
    a("v_xor_b32 v5, 64, v4")
    a("v_add_u32 v6, 0x10000, v4")
    a("v_add_u32 v7, 0x10000, v5")
    a("v_bfe_u32 v20, v1, 2, 2")
    a("v_and_b32 v21, 1, v2")
    a("v_lshl_or_b32 v21, v21, 2, v20")
    a("s_lshl_b32 s54, s58, 2")
    a("v_xor_b32 v21, s54, v21")
    a("v_lshl_add_u32 v23, v2, 3, v20")
    a("v_lshlrev_b32 v23, 8, v23")
    a("v_and_b32 v22, 3, v1")
    a("v_lshl_add_u32 v23, v22, 3, v23")
    a(f"v_add_u32 v23, {XB}, v23")
    for T in range(4):
        a(f"v_xor_b32 v22, {T}, v21")
        a(f"v_lshl_add_u32 v{8+T}, v22, 5, v23")
        a(f"v_add_u32 v{12+T}, 0x10000, v{8+T}")
    a("s_waitcnt lgkmcnt(0)")
    srd(a, 32, 50, WS_BYTES)
    srd(a, 28, 46, OUT_BYTES)
    att_setup()
    a("v_bfe_u32 v19, v1, 2, 2")
    a("v_lshl_add_u32 v19, v2, 3, v19")
    a("v_mul_u32_u24 v19, 320, v19")
    a("v_and_b32 v20, 3, v1")
    a("v_lshl_add_u32 v19, v20, 3, v19")
    a("s_mul_i32 s54, s58, 160")
    a(f"s_add_u32 s54, s54, {XB}")
    a("v_add_u32 v19, s54, v19")
    a("v_and_b32 v20, 1, v2")
    a("v_lshlrev_b32 v20, 5, v20")
    a("v_add_u32 v21, v19, v20")
    a("v_sub_u32 v20, v19, v20")
    a("s_cmp_eq_u32 s58, 0")
    a("s_cselect_b64 vcc, -1, 0")
    a(f"v_cndmask_b32 v{WOE}, v20, v21, vcc")
    a(f"v_cndmask_b32 v{WOO}, v21, v20, vcc")
    a("s_mul_i32 s54, s59, 12288")
    a("s_lshl_b32 s55, s58, 11")
    a("s_add_u32 s54, s54, s55")
    a(f"s_add_u32 s54, s54, {QB_LDS + 8192}")
    a(f"v_add_u32 v{QWA}, s54, v3")
    a("s_mul_i32 s54, s59, 4608")
    a(f"s_add_u32 s44, s54, {QB_LDS}")
    a(f"s_mul_i32 s54, s6, {PSZ}")
    a("s_add_u32 s65, s43, s54")
    a("s_lshl_b32 s54, s3, 13")
    a("s_add_u32 s65, s65, s54")
    a("s_add_u32 s66, s65, 4096")
    a("s_andn2_b32 s55, s2, 7")
    a("s_lshl_b32 s54, s59, 2")
    a("s_add_u32 s55, s55, s54")
    a("s_lshl_b32 s55, s55, 2")
    a("s_lshl_b32 s54, s58, 1")
    a("s_add_u32 s55, s55, s54")
    a("s_lshl_b32 s55, s55, 7")
    a("s_lshl_b32 s54, s6, 2")
    a("s_add_u32 s55, s55, s54")
    a(f"s_add_u32 s69, s55, {WS_FLAG2}")
    def hello_store():
        if local:
            a("s_cmp_lg_u32 s3, 0")
            a("s_cbranch_scc1 L_nohello")
            a("s_lshl_b32 s54, s7, 2")
            a("v_mov_b32 v20, s54")
            a("v_mov_b32 v21, s67")
            a("s_mov_b64 exec, 1")
            a("buffer_store_dword v21, v20, s[32:35], s68 offen sc1")
            a("s_mov_b64 exec, -1")
            a("L_nohello:")

    def fa(s, T): return s * 28 + T * 4
    def fb(s, qt): return s * 28 + 16 + qt * 4
    def reads(c, s):
        hi = (c % 3) == 2
        off0 = 0 if hi else (c % 3) * SLB
        L = []
        def A(T):
            ad = (12 if hi else 8) + T
            for hf in range(2):
                r = fa(s, T) + 2 * hf
                L.append(f"ds_read_b64_tr_b16 a[{r}:{r+1}], v{ad} offset:{off0 + (32*s + 4*hf)*256}")
        A(0)
        for qt in range(3):
            ad = (6 if hi else 4) + s
            r = fb(s, qt)
            L.append(f"ds_read_b128 a[{r}:{r+3}], v{ad} offset:{off0 + qt*2048}")
        for T in range(1, 4): A(T)
        return L
    def mfmas(c, s):
        L = []
        for T in range(4):
            for qt in range(3):
                d = ACC + (T * 3 + qt) * 4
                A = fa(s, T); B = fb(s, qt)
                C = "0" if (c == 0 and s == 0) else f"v[{d}:{d+3}]"
                L.append(f"v_mfma_f32_16x16x32_bf16 v[{d}:{d+3}], a[{A}:{A+3}], a[{B}:{B+3}], {C}")
        return L
    def dense(M, R, X=(), per=2):
        R = list(R); X = list(X)
        for i, m in enumerate(M):
            e(m)
            for _ in range(per):
                if R: e(R.pop(0))
                elif X: e(X.pop(0))
        for x in R + X: e(x)
    for c in range(10):
        a("s_barrier")
        part = sched[c]
        hp = (len(part) // 8) * 4
        X0 = part[:hp]; X1 = part[hp:]
        if c == 8 and local:
            X0 = hello_load() + X0
        if c == 0:
            for r in reads(0, 0): e(r)
            dense(mfmas(c, 0), reads(c, 1), X1)
        else:
            dense(mfmas(c - 1, 1), reads(c, 0), X0)
            if c < 9:
                dense(mfmas(c, 0), reads(c, 1), X1)
        if c < 9:
            e.drain()
        if c == 0:
            tag_setup()
            hello_store()
    stamp(cst)
    def qcvt(s, qt):
        A0 = ACC + ((2 * s) * 3 + qt) * 4
        B0 = ACC + ((2 * s + 1) * 3 + qt) * 4
        return [f"v_cvt_pk_bf16_f32 v{A0}, v{A0}, v{A0+1}",
                f"v_cvt_pk_bf16_f32 v{A0+1}, v{A0+2}, v{A0+3}",
                f"v_cvt_pk_bf16_f32 v{A0+2}, v{B0}, v{B0+1}",
                f"v_cvt_pk_bf16_f32 v{A0+3}, v{B0+2}, v{B0+3}",
                f"ds_write_b128 v{QWA}, v[{A0}:{A0+3}] offset:{qt*4096 + s*1024}"]

    class Sched:
        def __init__(self):
            self.R = []; self.pend = []
        def tick(self, n=1):
            for p_ in self.pend: p_[0] += n
        def filler(self, maxn):
            n = 0
            while n < maxn:
                if self.R:
                    e(self.R.pop(0)); self.tick(); n += 1
                elif self.pend and self.pend[0][0] >= self.pend[0][1]:
                    p_ = self.pend[0]
                    e(p_[2].pop(0)); self.tick(); n += 1
                    if not p_[2]:
                        self.pend.pop(0)
                else:
                    break
        def mfma(self, m, per=2):
            e(m); self.tick()
        def flush(self):
            while self.R or self.pend:
                if not self.R and self.pend[0][0] < self.pend[0][1]:
                    k = self.pend[0][1] - self.pend[0][0]
                    a(f"s_nop {k-1}"); self.tick(k)
                self.filler(4)
    M0 = mfmas(9, 0); M1 = mfmas(9, 1)
    seq = []
    for qt in range(3):
        seq += [(M0[0 * 3 + qt], None), (M0[1 * 3 + qt], None)]
    for qt in range(3):
        seq += [(M1[0 * 3 + qt], None), (M1[1 * 3 + qt], (0, qt))]
    for qt in range(3):
        seq += [(M0[2 * 3 + qt], None), (M0[3 * 3 + qt], None), (M1[2 * 3 + qt], None), (M1[3 * 3 + qt], (1, qt))]
    S = Sched()
    S.R = reads(9, 1)
    for m, comp in seq:
        S.mfma(m)
        if comp: S.pend.append([0, 8, qcvt(*comp), None])
        S.filler(2)
    S.flush()
    e.drain()

    SA = 32; PF = 44; MX = 50; TM = 51; SM = 52
    cexp = math.log2(math.e) / math.sqrt(128.0)
    cbits = struct.unpack("<I", struct.pack("<f", cexp))[0]
    def s_part(em, extra=()):
        extra = list(extra)
        for s in range(4):
            em(f"ds_read_b128 v[{QB+4*s}:{QB+4*s+3}], v{QRA} offset:{s*1024}")
        a(f"s_mov_b32 s14, {cbits:#x}")
        for s in range(4):
            for kt in range(3):
                d = SA + 4 * kt
                A = KF + (kt * 4 + s) * 4
                C = "0" if s == 0 else f"v[{d}:{d+3}]"
                em(f"v_mfma_f32_16x16x32_bf16 v[{d}:{d+3}], v[{A}:{A+3}], v[{QB+4*s}:{QB+4*s+3}], {C}")
                for _ in range(2):
                    if extra: em(extra.pop(0))
        for x in extra: em(x)
        if local:
            a("s_waitcnt vmcnt(0)")
            a(f"v_cmp_ne_u32 vcc, s67, v{HV}")
            a("s_mov_b64 s[56:57], vcc")
    def softmax_items(nopk=False):
        L = []
        L.append(f"v_max3_f32 v{MX}, v{SA}, v{SA+1}, v{SA+2}")
        L.append(f"v_max3_f32 v{TM}, v{SA+3}, v{SA+4}, v{SA+5}")
        L.append(f"v_max3_f32 v{MX}, v{MX}, v{SA+6}, v{SA+7}")
        L.append(f"v_max3_f32 v{TM}, v{TM}, v{SA+8}, v{SA+9}")
        L.append(f"v_max3_f32 v{MX}, v{MX}, v{SA+10}, v{SA+11}")
        L.append(f"v_max_f32 v{MX}, v{MX}, v{TM}")
        def xlane(op):
            for sw in ("v_permlane32_swap_b32", "v_permlane16_swap_b32"):
                L.append(f"v_mov_b32 v{TM}, v{MX}")
                L.append(f"s_nop 1\n{sw} v{MX}, v{TM}")
                L.append(f"s_nop 1\n{op} v{MX}, v{MX}, v{TM}")
        xlane("v_max_f32")
        L.append(f"v_mul_f32 v{MX}, s14, v{MX}")
        for k in range(12):
            L.append(f"v_fma_f32 v{SA+k}, v{SA+k}, s14, -v{MX}")
        for k in range(12):
            L.append(f"v_exp_f32 v{SA+k}, v{SA+k}")
            if nopk:
                if k == 2: L.append(f"v_add_f32 v{SM}, v{SA}, v{SA+1}")
                if k > 2: L.append(f"v_add_f32 v{SM}, v{SM}, v{SA+k-1}")
            else:
                if k == 4:
                    L.append(f"v_pk_add_f32 v[{SM}:{SM+1}], v[{SA}:{SA+1}], v[{SA+2}:{SA+3}]")
                if k in (6, 8, 10):
                    L.append(f"v_pk_add_f32 v[{SM}:{SM+1}], v[{SM}:{SM+1}], v[{SA+k-2}:{SA+k-1}]")
        if nopk:
            L.append(f"v_add_f32 v{MX}, v{SM}, v{SA+11}")
        else:
            L.append(f"s_nop 0\nv_pk_add_f32 v[{SM}:{SM+1}], v[{SM}:{SM+1}], v[{SA+10}:{SA+11}]")
            L.append(f"v_add_f32 v{MX}, v{SM}, v{SM+1}")
        xlane("v_add_f32")
        L.append(f"v_rcp_f32 v{MX}, v{MX}")
        if nopk:
            for k in range(12):
                L.append(("s_nop 0\n" if k == 0 else "") + f"v_mul_f32 v{SA+k}, v{SA+k}, v{MX}")
        else:
            L.append(f"s_nop 0\nv_mov_b32 v{TM}, v{MX}")
            for k in range(6):
                L.append(f"v_pk_mul_f32 v[{SA+2*k}:{SA+2*k+1}], v[{SA+2*k}:{SA+2*k+1}], v[{MX}:{TM}]")
        for k in range(6):
            L.append(f"v_cvt_pk_bf16_f32 v{PF+k}, v{SA+2*k}, v{SA+2*k+1}")
        L.append(f"buffer_store_dwordx4 v[{PF}:{PF+3}], v3, s[32:35], s63 offen sc1")
        L.append(f"buffer_store_dwordx2 v[{PF+4}:{PF+5}], v{L8}, s[32:35], s63 offen offset:1024 sc1")
        return L
    PWR = [f"ds_write_b128 v{PW4}, v[{PF}:{PF+3}]", f"ds_write_b64 v{PW2}, v[{PF+4}:{PF+5}] offset:1024"]
    def flag1_store():
        a("s_waitcnt vmcnt(0)")
        a("s_mov_b64 exec, 1")
        if local:
            l1 = a.label("L_fg"); l2 = a.label("L_fd")
            a("s_cmp_lg_u64 s[56:57], 0")
            a(f"s_cbranch_scc1 {l1}")
            a(f"buffer_store_dword v{VT}, v{VF}, s[32:35], s64 offen")
            a(f"s_branch {l2}")
            a(f"{l1}:")
        a(f"buffer_store_dword v{VT}, v{VF}, s[32:35], s64 offen sc1")
        if local:
            a(f"{l2}:")
        a("s_mov_b64 exec, -1")
    a("s_branch L_p2")
    a("L_attn:")
    a(f"s_setprio {hprio}")
    a("s_barrier")
    e2 = Emit(a)
    s_part(e2)
    a("s_barrier")
    a("s_nop 4")
    SL = softmax_items()
    for x in SL[:hsplit]: a(x)
    a("s_barrier")
    for x in SL[hsplit:]: a(x)
    for x in PWR: a(x)
    a("v_min_u32 v21, 11, v1")
    a("v_lshlrev_b32 v21, 2, v21")
    a("s_mul_i32 s54, s58, 4608")
    a("s_add_u32 s45, s45, s54")
    a(f"s_add_u32 s44, s54, {QB_LDS}")
    a("s_mov_b32 s53, 0")
    a("s_waitcnt lgkmcnt(0)")
    a("s_barrier")
    flag1_store()
    def fetch(hhs):
        lp = a.label("L_pf"); lg = a.label("L_gf")
        a("s_mov_b32 s15, 0")
        for hh in hhs:
            a(f"s_add_u32 s54, s7, {hh}")
            a("s_and_b32 s54, s54, 3")
            a("s_mul_i32 s54, s54, 3")
            a("s_lshl_b32 s54, 7, s54")
            a("s_or_b32 s15, s15, s54")
        a(f"{lp}:")
        a("buffer_load_dword v23, v21, s[32:35], s62 offen sc1")
        a("s_add_u32 s53, s53, 1")
        a("s_cmp_ge_u32 s53, 0x100000")
        a(f"s_cbranch_scc1 {lg}")
        a("s_waitcnt vmcnt(0)")
        a("v_cmp_eq_u32 vcc, s52, v23")
        a("s_andn2_b32 s54, s15, vcc_lo")
        a(f"s_cbranch_scc1 {lp}")
        a(f"{lg}:")
        for hh in hhs:
            a(f"s_add_u32 s54, s7, {hh}")
            a("s_and_b32 s54, s54, 3")
            a("s_mul_i32 s54, s54, 9216")
            a(f"s_add_u32 m0, s44, {PAREA[hh]}")
            a("s_add_u32 s54, s54, s45")
            for i in range(4):
                a(f"buffer_load_dwordx4 v3, s[32:35], s54 offen offset:{i*1024} sc1 lds")
            a(f"s_add_u32 m0, s44, {PAREA[hh] + 4096}")
            a("s_add_u32 s54, s54, 4096")
            a("s_mov_b32 exec_hi, 0")
            a("buffer_load_dwordx4 v3, s[32:35], s54 offen sc1 lds")
            a("s_mov_b32 exec_hi, -1")
    a("s_barrier")
    fetch([1])
    a("s_barrier")
    a("s_waitcnt vmcnt(0)")
    a("s_barrier")
    fetch([2, 3])
    a("s_barrier")
    a("s_waitcnt vmcnt(0)")
    a("s_barrier")
    a("s_branch L_reducer")
    a("L_p2:")

    PB32 = 8; PB2 = 20; OUT = 32; VW = 92; VWB32 = 152; VWB2 = 172
    def va(s, kt): return s * 32 + kt * 4
    def wb(s, nt): return s * 32 + 12 + nt * 4
    def reads2(q, s):
        L = []
        if s == 0 and q > 0:
            dlt = (QSLOT[q] - QSLOT[q - 1]) * SLB
            for r in range(4, 8):
                L.append(f"v_add_u32 v{r}, {dlt & 0xffffffff:#x}, v{r}")
        def W(nt):
            ad = 6 + (nt & 1)
            for hf in range(2):
                r = wb(s, nt) + 2 * hf
                L.append(f"ds_read_b64_tr_b16 a[{r}:{r+1}], v{ad} offset:{(32*s + 4*hf)*320 + 32*nt}")
        W(0)
        for kt in range(3):
            r = va(s, kt)
            L.append(f"ds_read_b128 a[{r}:{r+3}], v{4+s} offset:{kt*2048}")
        for nt in range(1, 5): W(nt)
        return L
    def mv(q, s, nt, kt):
        d = VW + (nt * 3 + kt) * 4
        C = "0" if (q % 2 == 0 and s == 0) else f"v[{d}:{d+3}]"
        return f"v_mfma_f32_16x16x32_bf16 v[{d}:{d+3}], a[{va(s,kt)}:{va(s,kt)+3}], a[{wb(s,nt)}:{wb(s,nt)+3}], {C}"
    def vcvt(hh, nt):
        L = []
        for kt in range(3):
            d = VW + (nt * 3 + kt) * 4
            o = (VWB32 + nt * 4 + kt * 2) if kt < 2 else (VWB2 + nt * 4 + (hh & 1) * 2)
            L += [f"v_cvt_pk_bf16_f32 v{o}, v{d}, v{d+1}", f"v_cvt_pk_bf16_f32 v{o+1}, v{d+2}, v{d+3}"]
        return L
    def preads(hh):
        L = []
        for qt in range(3):
            L.append(f"ds_read_b128 v[{PB32+4*qt}:{PB32+4*qt+3}], v0 offset:{PAREA[hh] + qt*1536}")
        for qt in range(3):
            r = PB2 + 4 * qt + (hh & 1) * 2
            L.append(f"ds_read_b64 v[{r}:{r+1}], v1 offset:{PAREA[hh] + qt*1536 + 1024}")
        return L
    def f32(hh, nt, qt):
        d = OUT + (nt * 3 + qt) * 4
        C = "0" if hh == 0 else f"v[{d}:{d+3}]"
        return f"v_mfma_f32_16x16x32_bf16 v[{d}:{d+3}], v[{VWB32+4*nt}:{VWB32+4*nt+3}], v[{PB32+4*qt}:{PB32+4*qt+3}], {C}"
    def fpair(nt, qt):
        d = OUT + (nt * 3 + qt) * 4
        return f"v_mfma_f32_16x16x32_bf16 v[{d}:{d+3}], v[{VWB2+4*nt}:{VWB2+4*nt+3}], v[{PB2+4*qt}:{PB2+4*qt+3}], v[{d}:{d+3}]"
    PK = VW
    def pcvt(f):
        d = OUT + f * 4; o = PK + 2 * f
        L = [f"v_cvt_pk_bf16_f32 v{o}, v{d}, v{d+1}", f"v_cvt_pk_bf16_f32 v{o+1}, v{d+2}, v{d+3}"]
        if f % 2 == 1 or f == 14:
            u = f // 2
            L.append(f"buffer_store_dwordx4 v[{PK+4*u}:{PK+4*u+3}], v4, s[32:35], {'s65' if u < 4 else 's66'} offen offset:{(u%4)*1024} sc1")
        return L
    S = Sched()
    def kstep(ks, per=2):
        q, s = ks >> 1, ks & 1
        last_of_head = (ks % 4 == 3)
        for nt in range(5):
            for kt in range(3):
                S.mfma(mv(q, s, nt, kt))
                if last_of_head and kt == 2:
                    S.pend.append([0, 8, vcvt(ks // 4, nt), None])
                S.filler(per)
    def final(hh):
        for nt in range(5):
            for qt in range(3):
                S.mfma(f32(hh, nt, qt)); S.filler(2)
        if hh & 1:
            for nt in range(5):
                for qt in range(3):
                    S.mfma(fpair(nt, qt)); S.filler(2)
    a(f"s_setprio {aprio}")
    a(f"v_add_u32 v4, {QSLOT[0]*SLB}, v4")
    a(f"v_add_u32 v5, {QSLOT[0]*SLB}, v5")
    a(f"v_add_u32 v6, {QSLOT[0]*SLB}, v{WOE}")
    a(f"v_add_u32 v7, {QSLOT[0]*SLB}, v{WOO}")
    a("v_add_u32 v0, s44, v3")
    a(f"v_add_u32 v1, s44, v{L8}")
    a("s_barrier")
    stamp(cst)
    s_part(e)
    a("s_barrier")
    stamp(cst)
    for r in reads2(0, 0): e(r)
    SMX = softmax_items(nopk) + PWR
    for _ in range(npre): e(SMX.pop(0))
    S.R = reads2(0, 1)
    S.pend.append([8, 8, SMX, None])
    kstep(0, smper)
    for x in S.R: e(x)
    S.R = []
    e.drain()
    for q in range(1, 8):
        a("s_barrier")
        stamp(cst)
        if q % 2 == 0:
            S.R = reads2(q, 0)
            kstep(2 * q - 1, 3)
            S.R = S.R + reads2(q, 1)
            if q == 2: flag1_store()
            for nt in range(5):
                while len(S.pend) > 4 - nt:
                    keep = S.R; S.R = []
                    if S.pend[0][0] < S.pend[0][1]:
                        k = S.pend[0][1] - S.pend[0][0]
                        a(f"s_nop {k-1}"); S.tick(k)
                    S.filler(1)
                    S.R = keep
                for kt in range(3):
                    S.mfma(mv(q, 0, nt, kt)); S.filler(2)
        else:
            S.R = reads2(q, 0) + (preads(q // 2 - 1) if q >= 3 else [])
            kstep(2 * q - 1, smper if q == 1 else 2)
            S.R = S.R + reads2(q, 1)
            if q >= 3: final(q // 2 - 1)
            if q == 7: S.R = S.R + preads(3)
            kstep(2 * q, smper if q == 1 else 2)
        S.flush()
        if q < 7: e.drain()
    S.R = ["v_mbcnt_lo_u32_b32 v7, -1, 0", "v_mbcnt_hi_u32_b32 v7, -1, v7",
           "v_bfe_u32 v5, v7, 2, 2", "v_lshrrev_b32 v6, 4, v7", "v_lshl_add_u32 v5, v5, 2, v6",
           "v_and_b32 v6, 3, v7", "v_lshlrev_b32 v6, 4, v6", "v_lshl_add_u32 v4, v5, 6, v6",
           "v_lshrrev_b32 v5, 1, v7", "v_and_b32 v6, 1, v7", "v_lshlrev_b32 v6, 7, v6", "v_lshl_add_u32 v5, v5, 9, v6",
           "v_mov_b32 v6, s52"]
    kstep(15, 3)
    ncvt = len(S.pend)
    for nt in range(5):
        def cvt_left(): return sum(1 for p_ in S.pend if p_[3] != "p")
        while cvt_left() > 4 - nt:
            if S.pend[0][0] < S.pend[0][1]:
                k = S.pend[0][1] - S.pend[0][0]
                a(f"s_nop {k-1}"); S.tick(k)
            S.filler(1)
        a("s_nop 1"); S.tick(2)
        for qt in range(3):
            S.mfma(f32(3, nt, qt)); S.filler(2)
        for qt in range(3):
            S.mfma(fpair(nt, qt))
            S.pend.append([0, 8, pcvt(nt * 3 + qt), "p"])
            S.filler(2)
    a("s_barrier")
    stamp(cst)
    S.tick()
    S.flush()
    a("s_mov_b64 exec, 0xff")
    a("s_waitcnt vmcnt(0)")
    a("buffer_store_dword v6, v5, s[32:35], s69 offen sc1")
    if stamps and cst:
        stamp()
        a("s_mov_b64 exec, -1")
        store_stamps(nstamp[0])
    a("L_end:")
    a("s_endpgm")
    txt = HEADER_COMMENTS + f"; @launch grid=(256,1,1) block=(512,1,1) lds={LDS_TOTAL}\n" + a.text()
    txt += '.section .rodata,"a"\n' + kernel_desc(name, 256, 102, 192)
    open(out, "w").write(txt)
    return nl if lst else nstamp[0]

if __name__ == "__main__":
    gen("k16.s")
    n = gen("k16a.s", stamps=True)
    nl = gen("k16l.s", stamps=True, swave=6)
    print(n, nl)
```

```python
import sys, math, struct, re
from asmgen import *
from gen13 import VM, Emit

WS_EPOCH = 0x0
WS_HELLO = 0x1000
WS_FLAG1 = 0x4000
WS_FLAG2 = 0x20000
WS_P     = 0x100000
WS_PART  = 0x800000
WS_STAMP = 0x8000000

SLB = 32768
XB = 12288
KB_LDS = 3 * SLB
QB_LDS = 2 * SLB
QSLOT = [4, 1, 3, 0, 4, 1, 3, 0]
PAREA = [0, 9216, 18432, 0]
LDS_TOTAL = 163840
PSZ = 32768


def gen(out, stamps=False, cyc=False, local=True, throttle=None, swave=0, kpos=4, kvlast=8, lprio=2, lprio2=1, aprio=1,
        fronts=3, allst=False, padfrom=None, n8=9, n9=20, ny=(8, 12, 16, 16, 16, 16, 16, 16), smper=2, nopk=True, hprio=3, npre=13, hsplit=26, cpf=True, flagpos=1, arr=False):
    a = Asm()
    name = NAME + "_kernel"
    nstamp = [0]
    def stamp(on=True):
        if not stamps or not on:
            return
        r = 70 + 2 * nstamp[0]
        assert r + 1 <= 101
        nstamp[0] += 1
        a(f"{'s_memtime' if cyc else 's_memrealtime'} s[{r}:{r+1}]")
    lst = swave == 6
    cst = swave < 4
    def store_stamps(n):
        a("s_waitcnt vmcnt(0) lgkmcnt(0)")
        a(f"s_cmp_lg_u32 s3, {swave}")
        a("s_cbranch_scc1 L_end")
        a("s_lshl_b32 s54, s2, 8")
        a(f"s_add_u32 s54, s54, {WS_STAMP}")
        a("v_mov_b32 v5, 0")
        a("s_mov_b64 exec, 1")
        for i in range(n):
            r = 70 + 2 * i
            a(f"v_mov_b32 v6, s{r}")
            a(f"v_mov_b32 v7, s{r+1}")
            a(f"buffer_store_dwordx2 v[6:7], v5, s[32:35], s54 offen offset:{8*i}")
            a("s_nop 1")

    ACC = 32; KF = 92; QB = 64
    HV = 140; KA = 141; TA_ = 142
    PW4 = 80; PW2 = 81; L8 = 82; VF = 83; VT = 84; QRA = 85; QWA = 86; WOE = 87; WOO = 88

    a('.amdgcn_target "amdgcn-amd-amdhsa--gfx950"')
    a(".text")
    kernel_begin(a, name)
    a("s_cmp_ge_u32 s2, 256")
    a("s_cbranch_scc1 L_end")
    stamp()
    a("s_load_dwordx16 s[36:51], s[0:1], 0")
    a("v_lshrrev_b32 v2, 6, v0")
    a("v_and_b32 v1, 63, v0")
    a("s_and_b32 s6, s2, 7")
    a("v_readfirstlane_b32 s3, v2")
    a("s_lshr_b32 s7, s2, 3")
    a("s_and_b32 s7, s7, 3")
    a("s_lshr_b32 s5, s2, 5")
    a("s_lshl_b32 s4, s6, 2")
    a("s_add_u32 s4, s4, s7")
    a("v_lshrrev_b32 v2, 4, v1")
    a("v_lshlrev_b32 v3, 4, v1")
    a("s_and_b32 s58, s3, 1")
    a("s_cmp_lt_u32 s3, 4")
    a("s_cbranch_scc1 L_compute")

    def att_setup():
        a("s_lshl_b32 s54, s5, 7")
        a("s_load_dword s52, s[50:51], s54")
        a("s_cmp_ge_u32 s3, 3")
        a("s_cselect_b32 s60, 1, 0")
        a("s_mul_i32 s54, s60, 3")
        a("s_sub_u32 s61, s3, s54")
        a("v_and_b32 v16, 15, v1")
        a("v_lshrrev_b32 v17, 1, v2")
        a("v_xor_b32 v17, v17, v16")
        a("v_lshlrev_b32 v17, 4, v17")
        a("v_lshl_add_u32 v17, v16, 8, v17")
        a("v_and_b32 v18, 1, v2")
        a("v_lshl_add_u32 v17, v18, 3, v17")
        a("s_mul_i32 s54, s60, 12288")
        a(f"s_add_u32 s54, s54, {KB_LDS}")
        a(f"v_add_u32 v{KA}, s54, v17")
        a("s_lshl_b32 s54, s5, 3")
        a("s_add_u32 s54, s54, s6")
        a("s_lshl_b32 s55, s54, 7")
        a(f"s_add_u32 s68, s55, {WS_HELLO}")
        a("s_lshl_b32 s55, s54, 8")
        a(f"s_add_u32 s62, s55, {WS_FLAG1}")
        a("s_lshl_b32 s55, s60, 7")
        a("s_add_u32 s64, s62, s55")
        a("s_mul_i32 s54, s54, 36864")
        a(f"s_add_u32 s45, s54, {WS_P}")
        a("s_mul_i32 s54, s7, 9216")
        a("s_add_u32 s54, s54, s45")
        a("s_mul_i32 s55, s3, 1536")
        a("s_add_u32 s63, s54, s55")
        a("s_add_u32 s36, s7, s5")
        a("s_and_b32 s36, s36, 3")
        a("s_lshr_b32 s37, s5, 2")
        a(f"s_add_u32 s55, s55, {QB_LDS}")
        a(f"v_add_u32 v{PW4}, s55, v3")
        a(f"v_lshlrev_b32 v{L8}, 3, v1")
        a(f"v_add_u32 v{PW2}, s55, v{L8}")
        a("s_lshl_b32 s55, s3, 12")
        a(f"s_add_u32 s55, s55, {QB_LDS + 8192}")
        a(f"v_add_u32 v{QRA}, s55, v3")
        a("s_mul_i32 s54, s7, 3")
        a("s_add_u32 s54, s54, s61")
        a("s_lshl_b32 s54, s54, 2")
        a(f"v_mov_b32 v{VF}, s54")
        a("s_lshl_b32 s54, s5, 2")
        a("s_add_u32 s54, s54, s36")
        a(f"s_mul_i32 s54, s54, {8*PSZ}")
        a(f"s_add_u32 s43, s54, {WS_PART}")
    def tag_setup():
        a("s_waitcnt lgkmcnt(0)")
        a("s_mul_i32 s52, s52, 0x41C64E6D")
        a("s_add_u32 s52, s52, 0x3039")
        a(f"v_mov_b32 v{VT}, s52")
        if local:
            a("s_getreg_b32 s54, hwreg(HW_REG_XCC_ID, 0, 4)")
            a("s_lshl_b32 s54, s54, 8")
            a("s_or_b32 s54, s54, 0x5a")
            a("s_xor_b32 s67, s52, s54")
    KL = []
    for x in range(8):
        t = TA_ + (x & 1)
        KL.append(f"v_xor_b32 v{t}, {x*32}, v{KA}")
        for kt in range(3):
            r = KF + (kt * 4 + (x >> 1)) * 4 + (x & 1) * 2
            KL.append(f"ds_read_b64 v[{r}:{r+1}], v{t} offset:{kt*4096}")
    def hello_load():
        return ["v_and_b32 v20, 3, v1", "v_lshlrev_b32 v20, 2, v20",
                f"buffer_load_dword v{HV}, v20, s[32:35], s68 offen sc1"]
    sched = {c: [] for c in range(10)}
    for k in range(8):
        best = min(range(kpos + 1, kvlast + 1), key=lambda c: (len(sched[c]), c))
        sched[best] += KL[4*k:4*k+4]

    vm = VM(a)
    a(f"s_setprio {lprio}")
    a("s_and_b32 s59, s3, 3")
    if fronts == 3:
        a("s_add_u32 s53, s7, s5")
        a("s_mul_i32 s54, s53, 43")
        a("s_lshr_b32 s54, s54, 7")
        a("s_mul_i32 s54, s54, 3")
        a("s_sub_u32 s53, s53, s54")
        a("s_mul_i32 s53, s53, 7")
        a("s_lshr_b32 s53, s53, 1")
        a("s_add_u32 s53, s53, s6")
    else:
        a("s_mul_i32 s53, s7, 3")
        a("s_add_u32 s53, s53, s5")
        a("s_add_u32 s53, s53, s6")
    for _ in range(2):
        a("s_cmp_ge_u32 s53, 10")
        a("s_cselect_b32 s54, 10, 0")
        a("s_sub_u32 s53, s53, s54")
    a("v_lshrrev_b32 v20, 3, v1")
    a("v_and_b32 v21, 7, v1")
    a("v_xor_b32 v21, v21, v2")
    a("s_mul_i32 s54, s5, 96")
    a("s_mul_i32 s55, s59, 24")
    a("s_add_u32 s54, s54, s55")
    a("v_add_u32 v20, s54, v20")
    a("v_mul_u32_u24 v20, 1280, v20")
    a("s_lshl_b32 s55, s58, 2")
    a("v_xor_b32 v22, s55, v21")
    a("v_xor_b32 v23, 4, v22")
    a("v_lshl_add_u32 v4, v22, 4, v20")
    a("v_lshl_add_u32 v5, v23, 4, v20")
    a(f"v_add_u32 v5, {10240-1024}, v5")
    a(f"v_add_u32 v6, {2*(10240-1024)}, v4")
    a("v_and_b32 v20, 15, v1")
    a("v_lshlrev_b32 v21, 1, v2")
    a("v_xor_b32 v20, v20, v21")
    a("s_lshl_b32 s54, s59, 4")
    a("v_add_u32 v21, s54, v2")
    a("v_lshlrev_b32 v21, 13, v21")
    a("s_lshl_b32 s54, s4, 8")
    a("v_add_u32 v21, s54, v21")
    a("v_lshl_add_u32 v7, v20, 4, v21")
    a(f"v_add_u32 v8, {32768-1024}, v7")
    a("v_xor_b32 v20, 8, v20")
    a("v_lshl_add_u32 v9, v20, 4, v21")
    a(f"v_add_u32 v9, {2*(32768-1024)}, v9")
    a(f"v_add_u32 v10, {32768-1024}, v9")
    a("s_mul_i32 s56, s59, 3072")
    a("s_lshl_b32 s57, s59, 12")
    a(f"s_add_u32 s57, s57, {XB}")
    a("s_waitcnt lgkmcnt(0)")
    srd(a, 8, 36, X_BYTES)
    srd(a, 20, 42, WQ_BYTES)

    def issue_chunk(c):
        sl = (c % 3) * SLB
        a("s_lshl_b32 s54, s53, 7")
        a(f"s_add_u32 m0, s56, {sl}")
        a("s_lshl_b32 s55, s53, 19")
        for i in range(3):
            a(f"buffer_load_dwordx4 v{4+i}, s[8:11], s54 offen offset:{i*1024} lds")
        a(f"s_add_u32 m0, s57, {sl}")
        a("s_add_u32 s53, s53, 1")
        for i in range(4):
            a(f"buffer_load_dwordx4 v{7+i}, s[20:23], s55 offen offset:{i*1024} lds")
        vm.issue(("c", c), 7)
        a("s_cmp_ge_u32 s53, 10")
        a("s_cselect_b32 s53, 0, s53")
    def issue_k():
        for i in range(6):
            if i % 4 == 0:
                a(f"s_add_u32 m0, s65, {KB_LDS + i*1024}")
                a(f"s_add_u32 s54, s66, {i*1024}")
            a(f"buffer_load_dwordx4 v{11 + (i & 3)}, s[12:15], s54 offen offset:{(i%4)*1024} lds")
        vm.issue("k", 6)
    issue_chunk(0)
    issue_chunk(1)
    srd(a, 12, 38, KV_BYTES)
    srd(a, 16, 40, KV_BYTES)
    srd(a, 32, 50, WS_BYTES)
    srd(a, 24, 44, WO_BYTES)
    srd(a, 28, 46, OUT_BYTES)
    a("s_lshr_b32 s55, s59, 1")
    a("s_lshl_b32 s54, s5, 1")
    a("s_add_u32 s54, s54, s55")
    a("s_lshl_b32 s54, s54, 5")
    a("s_add_u32 s54, s54, s4")
    a("s_mul_i32 s54, s54, 12288")
    a("s_mul_i32 s55, s58, 6144")
    a("s_add_u32 s66, s54, s55")
    a("s_mul_i32 s65, s59, 6144")
    a("v_lshlrev_b32 v20, 4, v2")
    a("v_xor_b32 v20, v3, v20")
    for i in range(4):
        a(f"s_lshl_b32 s54, s58, 1")
        a(f"s_add_u32 s54, s54, {i}")
        a("s_and_b32 s54, s54, 3")
        a("s_lshl_b32 s54, s54, 6")
        a(f"v_xor_b32 v{11+i}, s54, v20")
    att_setup()
    WOV = 144
    for i in range(5):
        a(f"v_add_u32 v20, {64*i}, v1")
        a("v_mul_u32_u24 v21, 52429, v20")
        a("v_lshrrev_b32 v21, 20, v21")
        a("v_mul_u32_u24 v23, 20, v21")
        a("v_sub_u32 v20, v20, v23")
        a("v_bfe_u32 v23, v21, 3, 1")
        a("v_lshlrev_b32 v23, 1, v23")
        a("v_xor_b32 v20, v23, v20")
        a("v_mul_u32_u24 v21, 1280, v21")
        a(f"v_lshl_add_u32 v{WOV+i}, v20, 4, v21")
        if 0 < i < 4:
            a(f"v_subrev_u32 v{WOV+i}, {1024*i}, v{WOV+i}")
    a("v_lshrrev_b32 v20, 3, v1")
    a("v_lshlrev_b32 v20, 8, v20")
    a("v_and_b32 v21, 7, v1")
    a("v_xor_b32 v21, v21, v2")
    a(f"v_lshl_add_u32 v{WOV+5}, v21, 4, v20")
    a("v_xor_b32 v21, 4, v21")
    a(f"v_lshl_add_u32 v{WOV+6}, v21, 4, v20")
    a(f"v_add_u32 v{WOV+6}, 1024, v{WOV+6}")
    a(f"v_add_u32 v{WOV+7}, 2048, v{WOV+5}")
    a(f"v_add_u32 v{WOV+8}, 2048, v{WOV+6}")
    a("s_mul_i32 s40, s6, 655360")
    a("s_mul_i32 s54, s36, 320")
    a("s_add_u32 s40, s40, s54")
    a("s_mul_i32 s54, s58, 20480")
    a("s_add_u32 s40, s40, s54")
    a("s_mul_i32 s41, s58, 5120")
    a(f"s_add_u32 s41, s41, {XB}")
    a("s_lshl_b32 s54, s5, 1")
    a("s_add_u32 s54, s54, s58")
    a("s_lshl_b32 s54, s54, 5")
    a("s_lshl_b32 s55, s6, 2")
    a("s_add_u32 s54, s54, s55")
    a("s_mul_i32 s38, s54, 12288")
    a("s_mul_i32 s39, s58, 6144")
    a("s_lshl_b32 s54, s2, 2")
    a("s_add_u32 s54, s54, s59")
    a("s_lshl_b32 s54, s54, 7")
    a(f"s_add_u32 s69, s54, {WS_FLAG2}")
    a("s_load_dword s42, s[50:51], s69")
    a("s_add_u32 s54, s69, 64")
    a("s_load_dword s42, s[50:51], s54")
    a("s_lshl_b32 s54, s58, 7")
    a("s_add_u32 s62, s62, s54")
    a("s_load_dword s42, s[50:51], s62")
    a("s_add_u32 s54, s62, 64")
    a("s_load_dword s42, s[50:51], s54")

    def q_items(q):
        sl = QSLOT[q] * SLB
        pre = (f"s_add_u32 s54, s7, {q>>1}\ns_and_b32 s54, s54, 3\ns_xor_b32 s55, s37, {q&1}\ns_mul_i32 s56, s54, 12288\n"
               "s_lshl_b32 s57, s55, 7\ns_add_u32 s56, s56, s57\ns_add_u32 s56, s56, s38\ns_lshl_b32 s54, s54, 1\n"
               "s_add_u32 s54, s54, s55\ns_mul_i32 s54, s54, 81920\ns_add_u32 s54, s54, s40\n")
        L = []
        for i in range(6):
            t = pre if i == 0 else ""
            if i % 4 == 0:
                t += f"s_add_u32 m0, s39, {sl + i*1024}\n" + ("s_add_u32 s56, s56, 8192\n" if i else "s_nop 0\n")
            t += f"buffer_load_dwordx4 v{WOV+5+(i&3)}, s[16:19], s56 offen offset:{(i%4)*1024} lds"
            L.append(t)
        for blk in range(2):
            for i in range(5):
                t = ""
                if i == 0:
                    t += f"s_add_u32 m0, s41, {sl + blk*10240}\n" + ("s_add_u32 s54, s54, 40960\n" if blk else "s_nop 0\n")
                if i == 4:
                    t += f"s_add_u32 m0, s41, {sl + blk*10240 + 4096}\ns_nop 0\nbuffer_load_dwordx4 v{WOV+i}, s[24:27], s54 offen lds"
                else:
                    t += f"buffer_load_dwordx4 v{WOV+i}, s[24:27], s54 offen offset:{i*1024} lds"
                L.append(t)
        return L
    QS = [(q, t) for q in range(8) for t in q_items(q)]
    qpos = [0]
    def issue_upto(n, maxq):
        while qpos[0] < min(n, (maxq + 1) * 16):
            q, t = QS[qpos[0]]
            a(t); vm.issue(("q", q)); qpos[0] += 1
    if kpos == 1: issue_k()
    def ld_k(c):
        part = sched[c]
        if not part: return
        l = a.label("L_nok")
        a("s_cmp_ge_u32 s3, 6")
        a(f"s_cbranch_scc1 {l}")
        for r in part: a(r)
        a(f"{l}:")
    for c in range(8):
        vm.wait(("c", c))
        a("s_barrier")
        stamp(lst and (allst or c % 2 == 0))
        issue_chunk(c + 2)
        if c + 2 == kpos: issue_k()
        if c == 1: tag_setup()
        ld_k(c)
    vm.wait(("c", 8))
    a("s_cmp_ge_u32 s3, 6")
    a("s_cbranch_scc1 L_q_loader")
    a("s_barrier")
    if local:
        for l in hello_load(): a(l)
    for r in sched[8]: a(r)
    a(f"s_waitcnt vmcnt({1 if local else 0}) lgkmcnt(0)")
    a("s_barrier")
    a("s_branch L_attn")
    a("L_q_loader:")
    a("s_barrier")
    stamp(lst)
    issue_upto(n8, 1)
    vm.wait(("c", 9))
    a("s_barrier")
    stamp(lst)
    a(f"s_setprio {lprio2}")
    issue_upto(n8 + n9, 2)
    a("s_barrier")
    stamp(lst)
    for q in range(0, 8):
        issue_upto(max((q + 1) * 16, qpos[0] + ny[q]), min(max(q + 2, 3), 7))
        vm.wait(("q", q))
        a("s_barrier")
    assert qpos[0] == 128
    stamp(lst)

    a("L_reducer:")
    a("s_setprio 0")
    a("v_and_b32 v22, 7, v1")
    a("v_lshlrev_b32 v22, 2, v22")
    a("s_waitcnt lgkmcnt(0)")
    a("s_lshr_b32 s60, s6, 2")
    a("s_and_b32 s61, s6, 3")
    a("s_lshr_b32 s40, s59, 1")
    a("v_bfe_u32 v7, v1, 2, 2")
    a("v_and_b32 v8, 3, v1")
    a("s_lshl_b32 s54, s58, 2")
    a("v_add_u32 v9, s54, v2")
    a("v_lshlrev_b32 v4, 10, v9")
    a("v_lshl_add_u32 v4, v8, 6, v4")
    a("v_lshl_add_u32 v4, v7, 4, v4")
    a("s_lshl_b32 s54, s60, 1")
    a("s_add_u32 s54, s54, s40")
    a("s_lshl_b32 s54, s54, 13")
    a("s_lshl_b32 s55, s61, 8")
    a("s_add_u32 s54, s54, s55")
    a("s_add_u32 s43, s43, s54")
    a("v_lshlrev_b32 v9, 1, v9")
    a("v_add_u32 v10, 1, v9")
    for (f, d) in ((9, 5), (10, 6)):
        a(f"v_mul_u32_u24 v13, 43, v{f}")
        a("v_lshrrev_b32 v13, 7, v13")
        a("v_mul_u32_u24 v14, 3, v13")
        a(f"v_sub_u32 v14, v{f}, v14")
        a("v_lshl_add_u32 v14, v14, 4, v7")
        a("v_mul_u32_u24 v14, 1280, v14")
        a(f"v_lshl_add_u32 v{d}, v13, 5, v14")
        a(f"v_lshl_add_u32 v{d}, v8, 3, v{d}")
    a("v_cmp_gt_u32 s[38:39], 15, v10")
    a("s_mul_i32 s54, s5, 96")
    a("s_mul_i32 s55, s60, 48")
    a("s_add_u32 s54, s54, s55")
    a("s_lshl_b32 s55, s61, 2")
    a("s_add_u32 s54, s54, s55")
    a("s_mul_i32 s54, s54, 1280")
    a("s_mul_i32 s55, s36, 320")
    a("s_add_u32 s54, s54, s55")
    a("s_mul_i32 s55, s40, 160")
    a("s_add_u32 s60, s54, s55")
    for src in range(8):
        a(f"s_add_u32 s{8+src}, s43, {src*PSZ}")
    a("s_mov_b32 s42, 0xffff0000")
    a("s_mov_b32 s53, 0")
    a("s_mov_b32 s61, 0")
    a("s_mov_b32 s41, 0")
    a("s_barrier")
    stamp(lst)
    a("L_poll2:")
    a("buffer_load_dword v23, v22, s[32:35], s69 offen sc1")
    a("s_add_u32 s53, s53, 1")
    a("s_cmp_ge_u32 s53, 0x100000")
    a("s_cbranch_scc1 L_got2")
    a("s_waitcnt vmcnt(0)")
    a("v_cmp_eq_u32 vcc, s52, v23")
    a("s_and_b32 s54, vcc_lo, 0xff")
    a("s_andn2_b32 s54, s54, s61")
    a("s_cbranch_scc0 L_poll2")
    a("s_or_b32 s61, s61, s54")
    for src in range(8):
        l = a.label("L_ns")
        a(f"s_bitcmp1_b32 s54, {src}")
        a(f"s_cbranch_scc0 {l}")
        r = 24 + 4 * src
        a(f"buffer_load_dwordx4 v[{r}:{r+3}], v4, s[32:35], s{8+src} offen sc1")
        a(f"{l}:")
    a("s_mov_b32 s55, s41")
    a("s_mov_b32 s41, s54")
    a("L_unp:")
    for src in range(8):
        l = a.label("L_nu")
        a(f"s_bitcmp1_b32 s55, {src}")
        a(f"s_cbranch_scc0 {l}")
        r = 24 + 4 * src; b = 64 + 8 * src
        for k in range(4):
            a(f"v_lshlrev_b32 v{b+2*k}, 16, v{r+k}")
            a(f"v_and_b32 v{b+1+2*k}, s42, v{r+k}")
        a(f"{l}:")
    a("s_cmp_lg_u32 s61, 0xff")
    a("s_cbranch_scc1 L_poll2")
    a("s_cmp_eq_u32 s41, 0")
    a("s_cbranch_scc1 L_got2")
    stamp(lst)
    a("s_waitcnt vmcnt(0)")
    a("s_mov_b32 s55, s41")
    a("s_mov_b32 s41, 0")
    a("s_branch L_unp")
    a("L_got2:")
    for lvl in (32, 16, 8):
        for r in range(0, lvl, 2):
            a(f"v_pk_add_f32 v[{64+r}:{65+r}], v[{64+r}:{65+r}], v[{64+lvl+r}:{65+lvl+r}]")
    for k in range(4):
        a(f"v_cvt_pk_bf16_f32 v{80+k}, v{64+2*k}, v{65+2*k}")
    a("buffer_store_dwordx2 v[80:81], v5, s[28:31], s60 offen")
    a("s_mov_b64 exec, s[38:39]")
    a("buffer_store_dwordx2 v[82:83], v6, s[28:31], s60 offen")
    a("s_mov_b64 exec, -1")
    a("s_and_b32 s54, s2, 31")
    a("s_or_b32 s54, s54, s59")
    a("s_cmp_lg_u32 s54, 0")
    a("s_cbranch_scc1 L_noep")
    a("s_lshl_b32 s54, s5, 7")
    a("v_mov_b32 v20, 0")
    a("v_mov_b32 v21, s52")
    a("s_mov_b64 exec, 1")
    a("buffer_store_dword v21, v20, s[32:35], s54 offen sc1")
    a("s_mov_b64 exec, -1")
    a("L_noep:")
    if stamps and lst:
        a("s_waitcnt vmcnt(0)")
        stamp()
        store_stamps(nstamp[0])
    a("s_endpgm")
    nl = nstamp[0]
    if stamps:
        nstamp[0] = 1

    a("L_compute:")
    e = Emit(a)
    if cpf:
        a("s_getpc_b64 s[8:9]")
        a("L_pc:")
        a(f"s_sub_u32 s8, s8, L_pc-{name}")
        a("s_subb_u32 s9, s9, 0")
        a("s_lshr_b32 s10, s2, 3")
        a("s_lshl_b32 s10, s10, 2")
        a("s_add_u32 s10, s10, s3")
        a("s_lshl_b32 s10, s10, 6")
        for k in range(3):
            a(f"s_min_u32 s11, s10, L_end-{name}")
            a("s_load_dword s12, s[8:9], s11")
            a("s_add_u32 s10, s10, 8192")
    a("s_lshr_b32 s59, s3, 1")
    a("v_and_b32 v20, 15, v1")
    a("v_lshrrev_b32 v21, 1, v20")
    a("v_xor_b32 v21, v21, v2")
    a("s_mul_i32 s54, s59, 48")
    a("v_add_u32 v20, s54, v20")
    a("v_lshlrev_b32 v20, 7, v20")
    a("v_lshl_add_u32 v4, v21, 4, v20")
    a("v_xor_b32 v5, 64, v4")
    a("v_add_u32 v6, 0x10000, v4")
    a("v_add_u32 v7, 0x10000, v5")
    a("v_bfe_u32 v20, v1, 2, 2")
    a("v_and_b32 v21, 1, v2")
    a("v_lshl_or_b32 v21, v21, 2, v20")
    a("s_lshl_b32 s54, s58, 2")
    a("v_xor_b32 v21, s54, v21")
    a("v_lshl_add_u32 v23, v2, 3, v20")
    a("v_lshlrev_b32 v23, 8, v23")
    a("v_and_b32 v22, 3, v1")
    a("v_lshl_add_u32 v23, v22, 3, v23")
    a(f"v_add_u32 v23, {XB}, v23")
    for T in range(4):
        a(f"v_xor_b32 v22, {T}, v21")
        a(f"v_lshl_add_u32 v{8+T}, v22, 5, v23")
        a(f"v_add_u32 v{12+T}, 0x10000, v{8+T}")
    a("s_waitcnt lgkmcnt(0)")
    srd(a, 32, 50, WS_BYTES)
    srd(a, 28, 46, OUT_BYTES)
    att_setup()
    a("v_bfe_u32 v19, v1, 2, 2")
    a("v_lshl_add_u32 v19, v2, 3, v19")
    a("v_mul_u32_u24 v19, 320, v19")
    a("v_and_b32 v20, 3, v1")
    a("v_lshl_add_u32 v19, v20, 3, v19")
    a("s_mul_i32 s54, s58, 160")
    a(f"s_add_u32 s54, s54, {XB}")
    a("v_add_u32 v19, s54, v19")
    a("v_and_b32 v20, 1, v2")
    a("v_lshlrev_b32 v20, 5, v20")
    a("v_add_u32 v21, v19, v20")
    a("v_sub_u32 v20, v19, v20")
    a("s_cmp_eq_u32 s58, 0")
    a("s_cselect_b64 vcc, -1, 0")
    a(f"v_cndmask_b32 v{WOE}, v20, v21, vcc")
    a(f"v_cndmask_b32 v{WOO}, v21, v20, vcc")
    a("s_mul_i32 s54, s59, 12288")
    a("s_lshl_b32 s55, s58, 11")
    a("s_add_u32 s54, s54, s55")
    a(f"s_add_u32 s54, s54, {QB_LDS + 8192}")
    a(f"v_add_u32 v{QWA}, s54, v3")
    a("s_mul_i32 s54, s59, 4608")
    a(f"s_add_u32 s44, s54, {QB_LDS}")
    a(f"s_mul_i32 s54, s6, {PSZ}")
    a("s_add_u32 s65, s43, s54")
    a("s_lshl_b32 s54, s3, 13")
    a("s_add_u32 s65, s65, s54")
    a("s_add_u32 s66, s65, 4096")
    a("s_andn2_b32 s55, s2, 7")
    a("s_lshl_b32 s54, s59, 2")
    a("s_add_u32 s55, s55, s54")
    a("s_lshl_b32 s55, s55, 2")
    a("s_lshl_b32 s54, s58, 1")
    a("s_add_u32 s55, s55, s54")
    a("s_lshl_b32 s55, s55, 7")
    a("s_lshl_b32 s54, s6, 2")
    a("s_add_u32 s55, s55, s54")
    a(f"s_add_u32 s69, s55, {WS_FLAG2}")
    a("L_padchain:")
    def hello_store():
        if local:
            a("s_cmp_lg_u32 s3, 0")
            a("s_cbranch_scc1 L_nohello")
            a("s_lshl_b32 s54, s7, 2")
            a("v_mov_b32 v20, s54")
            a("v_mov_b32 v21, s67")
            a("s_mov_b64 exec, 1")
            a("buffer_store_dword v21, v20, s[32:35], s68 offen sc1")
            a("s_mov_b64 exec, -1")
            a("L_nohello:")

    def fa(s, T): return s * 28 + T * 4
    def fb(s, qt): return s * 28 + 16 + qt * 4
    def reads(c, s):
        hi = (c % 3) == 2
        off0 = 0 if hi else (c % 3) * SLB
        L = []
        def A(T):
            ad = (12 if hi else 8) + T
            for hf in range(2):
                r = fa(s, T) + 2 * hf
                L.append(f"ds_read_b64_tr_b16 a[{r}:{r+1}], v{ad} offset:{off0 + (32*s + 4*hf)*256}")
        A(0)
        for qt in range(3):
            ad = (6 if hi else 4) + s
            r = fb(s, qt)
            L.append(f"ds_read_b128 a[{r}:{r+3}], v{ad} offset:{off0 + qt*2048}")
        for T in range(1, 4): A(T)
        return L
    def mfmas(c, s):
        L = []
        for T in range(4):
            for qt in range(3):
                d = ACC + (T * 3 + qt) * 4
                A = fa(s, T); B = fb(s, qt)
                C = "0" if (c == 0 and s == 0) else f"v[{d}:{d+3}]"
                L.append(f"v_mfma_f32_16x16x32_bf16 v[{d}:{d+3}], a[{A}:{A+3}], a[{B}:{B+3}], {C}")
        return L
    def dense(M, R, X=(), per=2):
        R = list(R); X = list(X)
        for i, m in enumerate(M):
            e(m)
            for _ in range(per):
                if R: e(R.pop(0))
                elif X: e(X.pop(0))
        for x in R + X: e(x)
    for c in range(10):
        a("s_barrier")
        part = sched[c]
        hp = (len(part) // 8) * 4
        X0 = part[:hp]; X1 = part[hp:]
        if c == 8 and local:
            X0 = hello_load() + X0
        if c == 0:
            for r in reads(0, 0): e(r)
            dense(mfmas(c, 0), reads(c, 1), X1)
        else:
            dense(mfmas(c - 1, 1), reads(c, 0), X0)
            if c < 9:
                dense(mfmas(c, 0), reads(c, 1), X1)
        if c < 9:
            e.drain()
        if c == 0:
            tag_setup()
            hello_store()
    stamp(cst)
    def qcvt(s, qt):
        A0 = ACC + ((2 * s) * 3 + qt) * 4
        B0 = ACC + ((2 * s + 1) * 3 + qt) * 4
        return [f"v_cvt_pk_bf16_f32 v{A0}, v{A0}, v{A0+1}",
                f"v_cvt_pk_bf16_f32 v{A0+1}, v{A0+2}, v{A0+3}",
                f"v_cvt_pk_bf16_f32 v{A0+2}, v{B0}, v{B0+1}",
                f"v_cvt_pk_bf16_f32 v{A0+3}, v{B0+2}, v{B0+3}",
                f"ds_write_b128 v{QWA}, v[{A0}:{A0+3}] offset:{qt*4096 + s*1024}"]

    class Sched:
        def __init__(self):
            self.R = []; self.pend = []
        def tick(self, n=1):
            for p_ in self.pend: p_[0] += n
        def filler(self, maxn):
            n = 0
            while n < maxn:
                if self.R:
                    e(self.R.pop(0)); self.tick(); n += 1
                elif self.pend and self.pend[0][0] >= self.pend[0][1]:
                    p_ = self.pend[0]
                    e(p_[2].pop(0)); self.tick(); n += 1
                    if not p_[2]:
                        self.pend.pop(0)
                else:
                    break
        def mfma(self, m, per=2):
            e(m); self.tick()
        def flush(self):
            while self.R or self.pend:
                if not self.R and self.pend[0][0] < self.pend[0][1]:
                    k = self.pend[0][1] - self.pend[0][0]
                    a(f"s_nop {k-1}"); self.tick(k)
                self.filler(4)
    M0 = mfmas(9, 0); M1 = mfmas(9, 1)
    seq = []
    for qt in range(3):
        seq += [(M0[0 * 3 + qt], None), (M0[1 * 3 + qt], None)]
    for qt in range(3):
        seq += [(M1[0 * 3 + qt], None), (M1[1 * 3 + qt], (0, qt))]
    for qt in range(3):
        seq += [(M0[2 * 3 + qt], None), (M0[3 * 3 + qt], None), (M1[2 * 3 + qt], None), (M1[3 * 3 + qt], (1, qt))]
    S = Sched()
    S.R = reads(9, 1)
    for m, comp in seq:
        S.mfma(m)
        if comp: S.pend.append([0, 8, qcvt(*comp), None])
        S.filler(2)
    S.flush()
    e.drain()

    SA = 32; PF = 44; MX = 50; TM = 51; SM = 52
    cexp = math.log2(math.e) / math.sqrt(128.0)
    cbits = struct.unpack("<I", struct.pack("<f", cexp))[0]
    def s_part(em, extra=()):
        extra = list(extra)
        for s in range(4):
            em(f"ds_read_b128 v[{QB+4*s}:{QB+4*s+3}], v{QRA} offset:{s*1024}")
        a(f"s_mov_b32 s14, {cbits:#x}")
        for s in range(4):
            for kt in range(3):
                d = SA + 4 * kt
                A = KF + (kt * 4 + s) * 4
                C = "0" if s == 0 else f"v[{d}:{d+3}]"
                em(f"v_mfma_f32_16x16x32_bf16 v[{d}:{d+3}], v[{A}:{A+3}], v[{QB+4*s}:{QB+4*s+3}], {C}")
                for _ in range(2):
                    if extra: em(extra.pop(0))
        for x in extra: em(x)
        if local:
            a("s_waitcnt vmcnt(0)")
            a(f"v_cmp_ne_u32 vcc, s67, v{HV}")
            a("s_mov_b64 s[56:57], vcc")
    def softmax_items(nopk=False):
        L = []
        L.append(f"v_max3_f32 v{MX}, v{SA}, v{SA+1}, v{SA+2}")
        L.append(f"v_max3_f32 v{TM}, v{SA+3}, v{SA+4}, v{SA+5}")
        L.append(f"v_max3_f32 v{MX}, v{MX}, v{SA+6}, v{SA+7}")
        L.append(f"v_max3_f32 v{TM}, v{TM}, v{SA+8}, v{SA+9}")
        L.append(f"v_max3_f32 v{MX}, v{MX}, v{SA+10}, v{SA+11}")
        L.append(f"v_max_f32 v{MX}, v{MX}, v{TM}")
        def xlane(op):
            for sw in ("v_permlane32_swap_b32", "v_permlane16_swap_b32"):
                L.append(f"v_mov_b32 v{TM}, v{MX}")
                L.append(f"s_nop 1\n{sw} v{MX}, v{TM}")
                L.append(f"s_nop 1\n{op} v{MX}, v{MX}, v{TM}")
        xlane("v_max_f32")
        L.append(f"v_mul_f32 v{MX}, s14, v{MX}")
        for k in range(12):
            L.append(f"v_fma_f32 v{SA+k}, v{SA+k}, s14, -v{MX}")
        for k in range(12):
            L.append(f"v_exp_f32 v{SA+k}, v{SA+k}")
            if nopk:
                if k == 2: L.append(f"v_add_f32 v{SM}, v{SA}, v{SA+1}")
                if k > 2: L.append(f"v_add_f32 v{SM}, v{SM}, v{SA+k-1}")
            else:
                if k == 4:
                    L.append(f"v_pk_add_f32 v[{SM}:{SM+1}], v[{SA}:{SA+1}], v[{SA+2}:{SA+3}]")
                if k in (6, 8, 10):
                    L.append(f"v_pk_add_f32 v[{SM}:{SM+1}], v[{SM}:{SM+1}], v[{SA+k-2}:{SA+k-1}]")
        if nopk:
            L.append(f"v_add_f32 v{MX}, v{SM}, v{SA+11}")
        else:
            L.append(f"s_nop 0\nv_pk_add_f32 v[{SM}:{SM+1}], v[{SM}:{SM+1}], v[{SA+10}:{SA+11}]")
            L.append(f"v_add_f32 v{MX}, v{SM}, v{SM+1}")
        xlane("v_add_f32")
        L.append(f"v_rcp_f32 v{MX}, v{MX}")
        if nopk:
            for k in range(12):
                L.append(("s_nop 0\n" if k == 0 else "") + f"v_mul_f32 v{SA+k}, v{SA+k}, v{MX}")
        else:
            L.append(f"s_nop 0\nv_mov_b32 v{TM}, v{MX}")
            for k in range(6):
                L.append(f"v_pk_mul_f32 v[{SA+2*k}:{SA+2*k+1}], v[{SA+2*k}:{SA+2*k+1}], v[{MX}:{TM}]")
        for k in range(6):
            L.append(f"v_cvt_pk_bf16_f32 v{PF+k}, v{SA+2*k}, v{SA+2*k+1}")
        L.append(f"buffer_store_dwordx4 v[{PF}:{PF+3}], v3, s[32:35], s63 offen sc1")
        L.append(f"buffer_store_dwordx2 v[{PF+4}:{PF+5}], v{L8}, s[32:35], s63 offen offset:1024 sc1")
        return L
    PWR = [f"ds_write_b128 v{PW4}, v[{PF}:{PF+3}]", f"ds_write_b64 v{PW2}, v[{PF+4}:{PF+5}] offset:1024"]
    def flag1_store():
        a("s_waitcnt vmcnt(0)")
        a("s_mov_b64 exec, 1")
        if local:
            l1 = a.label("L_fg"); l2 = a.label("L_fd")
            a("s_cmp_lg_u64 s[56:57], 0")
            a(f"s_cbranch_scc1 {l1}")
            a(f"buffer_store_dword v{VT}, v{VF}, s[32:35], s64 offen")
            a(f"s_branch {l2}")
            a(f"{l1}:")
        a(f"buffer_store_dword v{VT}, v{VF}, s[32:35], s64 offen sc1")
        if local:
            a(f"{l2}:")
        a("s_mov_b64 exec, -1")
    a("s_branch L_p2")
    a("L_attn:")
    a(f"s_setprio {hprio}")
    a("s_barrier")
    e2 = Emit(a)
    s_part(e2)
    a("s_barrier")
    a("s_nop 4")
    SL = softmax_items()
    for x in SL[:hsplit]: a(x)
    a("s_barrier")
    for x in SL[hsplit:]: a(x)
    for x in PWR: a(x)
    a("v_min_u32 v21, 11, v1")
    a("v_lshlrev_b32 v21, 2, v21")
    a("s_mul_i32 s54, s58, 4608")
    a("s_add_u32 s45, s45, s54")
    a(f"s_add_u32 s44, s54, {QB_LDS}")
    a("s_mov_b32 s53, 0")
    a("s_waitcnt lgkmcnt(0)")
    a("s_barrier")
    flag1_store()
    def fetch(hhs):
        lp = a.label("L_pf"); lg = a.label("L_gf")
        a("s_mov_b32 s15, 0")
        for hh in hhs:
            a(f"s_add_u32 s54, s7, {hh}")
            a("s_and_b32 s54, s54, 3")
            a("s_mul_i32 s54, s54, 3")
            a("s_lshl_b32 s54, 7, s54")
            a("s_or_b32 s15, s15, s54")
        a(f"{lp}:")
        a("buffer_load_dword v23, v21, s[32:35], s62 offen sc1")
        a("s_add_u32 s53, s53, 1")
        a("s_cmp_ge_u32 s53, 0x100000")
        a(f"s_cbranch_scc1 {lg}")
        a("s_waitcnt vmcnt(0)")
        a("v_cmp_eq_u32 vcc, s52, v23")
        a("s_andn2_b32 s54, s15, vcc_lo")
        a(f"s_cbranch_scc1 {lp}")
        a(f"{lg}:")
        for hh in hhs:
            a(f"s_add_u32 s54, s7, {hh}")
            a("s_and_b32 s54, s54, 3")
            a("s_mul_i32 s54, s54, 9216")
            a(f"s_add_u32 m0, s44, {PAREA[hh]}")
            a("s_add_u32 s54, s54, s45")
            for i in range(4):
                a(f"buffer_load_dwordx4 v3, s[32:35], s54 offen offset:{i*1024} sc1 lds")
            a(f"s_add_u32 m0, s44, {PAREA[hh] + 4096}")
            a("s_add_u32 s54, s54, 4096")
            a("s_mov_b32 exec_hi, 0")
            a("buffer_load_dwordx4 v3, s[32:35], s54 offen sc1 lds")
            a("s_mov_b32 exec_hi, -1")
    a("s_barrier")
    fetch([1])
    a("s_barrier")
    a("s_waitcnt vmcnt(0)")
    a("s_barrier")
    fetch([2, 3])
    a("s_barrier")
    a("s_waitcnt vmcnt(0)")
    a("s_barrier")
    a("s_branch L_reducer")
    a("L_p2:")

    PB32 = 8; PB2 = 20; OUT = 32; VW = 92; VWB32 = 152; VWB2 = 172
    def va(s, kt): return s * 32 + kt * 4
    def wb(s, nt): return s * 32 + 12 + nt * 4
    def reads2(q, s):
        L = []
        if s == 0 and q > 0:
            dlt = (QSLOT[q] - QSLOT[q - 1]) * SLB
            for r in range(4, 8):
                L.append(f"v_add_u32 v{r}, {dlt & 0xffffffff:#x}, v{r}")
        def W(nt):
            ad = 6 + (nt & 1)
            for hf in range(2):
                r = wb(s, nt) + 2 * hf
                L.append(f"ds_read_b64_tr_b16 a[{r}:{r+1}], v{ad} offset:{(32*s + 4*hf)*320 + 32*nt}")
        W(0)
        for kt in range(3):
            r = va(s, kt)
            L.append(f"ds_read_b128 a[{r}:{r+3}], v{4+s} offset:{kt*2048}")
        for nt in range(1, 5): W(nt)
        return L
    def mv(q, s, nt, kt):
        d = VW + (nt * 3 + kt) * 4
        C = "0" if (q % 2 == 0 and s == 0) else f"v[{d}:{d+3}]"
        return f"v_mfma_f32_16x16x32_bf16 v[{d}:{d+3}], a[{va(s,kt)}:{va(s,kt)+3}], a[{wb(s,nt)}:{wb(s,nt)+3}], {C}"
    def vcvt(hh, nt):
        L = []
        for kt in range(3):
            d = VW + (nt * 3 + kt) * 4
            o = (VWB32 + nt * 4 + kt * 2) if kt < 2 else (VWB2 + nt * 4 + (hh & 1) * 2)
            L += [f"v_cvt_pk_bf16_f32 v{o}, v{d}, v{d+1}", f"v_cvt_pk_bf16_f32 v{o+1}, v{d+2}, v{d+3}"]
        return L
    def preads(hh):
        L = []
        for qt in range(3):
            L.append(f"ds_read_b128 v[{PB32+4*qt}:{PB32+4*qt+3}], v0 offset:{PAREA[hh] + qt*1536}")
        for qt in range(3):
            r = PB2 + 4 * qt + (hh & 1) * 2
            L.append(f"ds_read_b64 v[{r}:{r+1}], v1 offset:{PAREA[hh] + qt*1536 + 1024}")
        return L
    def f32(hh, nt, qt):
        d = OUT + (nt * 3 + qt) * 4
        C = "0" if hh == 0 else f"v[{d}:{d+3}]"
        return f"v_mfma_f32_16x16x32_bf16 v[{d}:{d+3}], v[{VWB32+4*nt}:{VWB32+4*nt+3}], v[{PB32+4*qt}:{PB32+4*qt+3}], {C}"
    def fpair(nt, qt):
        d = OUT + (nt * 3 + qt) * 4
        return f"v_mfma_f32_16x16x32_bf16 v[{d}:{d+3}], v[{VWB2+4*nt}:{VWB2+4*nt+3}], v[{PB2+4*qt}:{PB2+4*qt+3}], v[{d}:{d+3}]"
    PK = VW
    def pcvt(f):
        d = OUT + f * 4; o = PK + 2 * f
        L = [f"v_cvt_pk_bf16_f32 v{o}, v{d}, v{d+1}", f"v_cvt_pk_bf16_f32 v{o+1}, v{d+2}, v{d+3}"]
        if f % 2 == 1 or f == 14:
            u = f // 2
            L.append(f"buffer_store_dwordx4 v[{PK+4*u}:{PK+4*u+3}], v4, s[32:35], {'s65' if u < 4 else 's66'} offen offset:{(u%4)*1024} sc1")
        return L
    S = Sched()
    def kstep(ks, per=2):
        q, s = ks >> 1, ks & 1
        last_of_head = (ks % 4 == 3)
        for nt in range(5):
            for kt in range(3):
                S.mfma(mv(q, s, nt, kt))
                if last_of_head and kt == 2:
                    S.pend.append([0, 8, vcvt(ks // 4, nt), None])
                S.filler(per)
    def final(hh):
        for nt in range(5):
            for qt in range(3):
                S.mfma(f32(hh, nt, qt)); S.filler(2)
        if hh & 1:
            for nt in range(5):
                for qt in range(3):
                    S.mfma(fpair(nt, qt)); S.filler(2)
    a(f"s_setprio {aprio}")
    a(f"v_add_u32 v4, {QSLOT[0]*SLB}, v4")
    a(f"v_add_u32 v5, {QSLOT[0]*SLB}, v5")
    a(f"v_add_u32 v6, {QSLOT[0]*SLB}, v{WOE}")
    a(f"v_add_u32 v7, {QSLOT[0]*SLB}, v{WOO}")
    a("v_add_u32 v0, s44, v3")
    a(f"v_add_u32 v1, s44, v{L8}")
    stamp(cst and arr)
    a("s_barrier")
    stamp(cst)
    s_part(e)
    stamp(cst and arr)
    a("s_barrier")
    stamp(cst)
    for r in reads2(0, 0): e(r)
    SMX = softmax_items(nopk) + PWR
    for _ in range(npre): e(SMX.pop(0))
    S.R = reads2(0, 1)
    S.pend.append([8, 8, SMX, None])
    kstep(0, smper)
    for x in S.R: e(x)
    S.R = []
    e.drain()
    for q in range(1, 8):
        stamp(cst and arr and q < 5)
        a("s_barrier")
        stamp(cst and (not arr or q < 5))
        if q % 2 == 0:
            S.R = reads2(q, 0)
            kstep(2 * q - 1, 3)
            S.R = S.R + reads2(q, 1)
            if q == 2 and flagpos == 0: flag1_store()
            for nt in range(5):
                while len(S.pend) > 4 - nt:
                    keep = S.R; S.R = []
                    if S.pend[0][0] < S.pend[0][1]:
                        k = S.pend[0][1] - S.pend[0][0]
                        a(f"s_nop {k-1}"); S.tick(k)
                    S.filler(1)
                    S.R = keep
                for kt in range(3):
                    S.mfma(mv(q, 0, nt, kt)); S.filler(2)
        else:
            S.R = reads2(q, 0) + (preads(q // 2 - 1) if q >= 3 else [])
            kstep(2 * q - 1, smper if q == 1 else 2)
            S.R = S.R + reads2(q, 1)
            if q >= 3: final(q // 2 - 1)
            if q == 7: S.R = S.R + preads(3)
            kstep(2 * q, smper if q == 1 else 2)
        S.flush()
        if q == 2 and flagpos == 1: flag1_store()
        if q < 7: e.drain()
    S.R = ["v_mbcnt_lo_u32_b32 v7, -1, 0", "v_mbcnt_hi_u32_b32 v7, -1, v7",
           "v_bfe_u32 v5, v7, 2, 2", "v_lshrrev_b32 v6, 4, v7", "v_lshl_add_u32 v5, v5, 2, v6",
           "v_and_b32 v6, 3, v7", "v_lshlrev_b32 v6, 4, v6", "v_lshl_add_u32 v4, v5, 6, v6",
           "v_lshrrev_b32 v5, 1, v7", "v_and_b32 v6, 1, v7", "v_lshlrev_b32 v6, 7, v6", "v_lshl_add_u32 v5, v5, 9, v6",
           "v_mov_b32 v6, s52"]
    kstep(15, 3)
    ncvt = len(S.pend)
    for nt in range(5):
        def cvt_left(): return sum(1 for p_ in S.pend if p_[3] != "p")
        while cvt_left() > 4 - nt:
            if S.pend[0][0] < S.pend[0][1]:
                k = S.pend[0][1] - S.pend[0][0]
                a(f"s_nop {k-1}"); S.tick(k)
            S.filler(1)
        a("s_nop 1"); S.tick(2)
        for qt in range(3):
            S.mfma(f32(3, nt, qt)); S.filler(2)
        for qt in range(3):
            S.mfma(fpair(nt, qt))
            S.pend.append([0, 8, pcvt(nt * 3 + qt), "p"])
            S.filler(2)
    a("s_barrier")
    stamp(cst)
    S.tick()
    S.flush()
    a("s_mov_b64 exec, 0xff")
    a("s_waitcnt vmcnt(0)")
    a("buffer_store_dword v6, v5, s[32:35], s69 offen sc1")
    if stamps and cst:
        stamp()
        a("s_mov_b64 exec, -1")
        store_stamps(nstamp[0])
    a("L_end:")
    a("s_endpgm")
    txt = HEADER_COMMENTS + f"; @launch grid=(256,1,1) block=(512,1,1) lds={LDS_TOTAL}\n" + a.text()
    txt += '.section .rodata,"a"\n' + kernel_desc(name, 256, 102, 192)
    open(out, "w").write(txt)
    return nl if lst else nstamp[0]

if __name__ == "__main__":
    gen("k16.s")
    n = gen("k16a.s", stamps=True)
    nl = gen("k16l.s", stamps=True, swave=6)
    print(n, nl)
```
